```python
import torch

def _softmax(x, axis=-1):
    return torch.softmax(x, dim=axis)
def _gelu(x):
    return torch.nn.functional.gelu(x, approximate="tanh")
def _silu(x):
    return torch.nn.functional.silu(x)
def _sigmoid(x):
    return torch.sigmoid(x)
def _layernorm(x, axis=-1, eps=1e-5):
    m = x.mean(dim=axis, keepdim=True)
    v = x.var(dim=axis, keepdim=True, unbiased=False)
    return (x - m) / torch.sqrt(v + eps)
def _scatter_add(tgt, idx, src, axis=0):
    return tgt.clone().index_add_(axis, idx, src)
def _segment_sum(src, seg, n):
    out = torch.zeros((n,) + src.shape[1:], dtype=src.dtype)
    return out.index_add_(0, seg, src)
def _pad(x, pw):
    flat = tuple(v for pair in reversed(pw) for v in pair)
    return torch.nn.functional.pad(x, flat)

kernel_name = 'gated_mix__ssm_conv_h3__ssm_conv_s4d__prompt'

def setup_inputs():

    _w = (lambda a: (lambda t: t.to(torch.bfloat16) if t.is_floating_point() else t)(torch.as_tensor(a)))
    def _A_setup():
        B, S, D = 1, 2048, 640
        ks = 4
        return {
            "q": _w((lambda *s: torch.randn(*s, dtype=torch.bfloat16) * 0.05)(B, S, D)),
            "k": _w((lambda *s: torch.randn(*s, dtype=torch.bfloat16) * 0.4)(B, S, D)),
            "v": _w((lambda *s: torch.randn(*s, dtype=torch.bfloat16) * 0.2)(B, S, D)),
            "shift_k": _w((lambda *s: torch.randn(*s, dtype=torch.bfloat16) * 0.4)(D, ks) * 0.5),
            "ssm_k": _w((lambda *s: torch.randn(*s, dtype=torch.bfloat16) * 0.4)(D, S) * (1.0 / S ** 0.5)),
            "ssm_D": _w((lambda *s: torch.randn(*s, dtype=torch.bfloat16) * 0.2)(D)),
        }
    _A_in = _A_setup()

    def _B_setup():
        Bsz, L, D, N = 1, 2048, 640, 192
        return {
            "u": _w((lambda *s: torch.randn(*s, dtype=torch.bfloat16) * 0.05)(Bsz, L, D)),
            "log_A_real": _w((lambda *s: torch.randn(*s, dtype=torch.bfloat16) * 3.2)(D, N) * 0.5),
            "A_imag": _w((lambda *s: torch.randn(*s, dtype=torch.bfloat16) * 0.05)(D, N) * 3.14),
            "C_real": _w((lambda *s: torch.randn(*s, dtype=torch.bfloat16) * 0.1)(D, N) / N ** 0.5),
            "C_imag": _w((lambda *s: torch.randn(*s, dtype=torch.bfloat16) * 0.1)(D, N) / N ** 0.5),
            "log_dt": _w((lambda *s: torch.randn(*s, dtype=torch.bfloat16) * 0.05)(D) * 0.5 - 4.0),
            "D_skip": _w((lambda *s: torch.randn(*s, dtype=torch.bfloat16) * 0.05)(D)),
        }
    _B_in = _B_setup()

    return {
        "A_q": _A_in["q"],
        "A_k": _A_in["k"],
        "A_v": _A_in["v"],
        "A_shift_k": _A_in["shift_k"],
        "A_ssm_k": _A_in["ssm_k"],
        "A_ssm_D": _A_in["ssm_D"],
        "B_u": _B_in["u"],
        "B_log_A_real": _B_in["log_A_real"],
        "B_A_imag": _B_in["A_imag"],
        "B_C_real": _B_in["C_real"],
        "B_C_imag": _B_in["C_imag"],
        "B_log_dt": _B_in["log_dt"],
        "B_D_skip": _B_in["D_skip"],
        "gate_w": _w((lambda *s: torch.randn(*s, dtype=torch.bfloat16) * 0.05)(640) * 16.0),
    }

def reference(A_q, A_k, A_v, A_shift_k, A_ssm_k, A_ssm_D, B_u, B_log_A_real, B_A_imag, B_C_real, B_C_imag, B_log_dt, B_D_skip, gate_w):
    def _A_ref(q, k, v, shift_k, ssm_k, ssm_D):
        B, S, D = q.shape
        ks = shift_k.shape[-1]
        k_pad = _pad(k, ((0, 0), (ks - 1, 0), (0, 0)))
        k_shift = torch.zeros_like(k)
        for t in range(ks):
            k_shift = k_shift + k_pad[:, t:t + S, :] * shift_k[:, ks - 1 - t][None, None, :]
        kv = k_shift * v
        L = 2 * S
        kv_pad = _pad(kv, ((0, 0), (0, S), (0, 0)))
        kf_pad = _pad(ssm_k, ((0, 0), (0, S)))
        kv_f = (lambda x, axes=(-2,-1): torch.fft.rfft2(x.float(), dim=axes))(kv_pad[:, None, :, :], axes=(1, 2))
        kf_f = (lambda x, axes=(-2,-1): torch.fft.rfft2(x.float(), dim=axes))(kf_pad[:, None, :], axes=(1, 2))
        kf_f = (lambda x, *d: x.permute(*d))(kf_f, 1, 2, 0)
        y_f = kv_f * kf_f[None, :, :, :]
        y = (lambda x, s, axes=(-2,-1): torch.fft.irfft2(x, s=s, dim=axes).to(torch.bfloat16))(y_f, (1, L), axes=(1, 2))[:, 0, :S, :]
        y = y + kv * ssm_D[None, None, :]
        return q * y

    def _B_ref(u, log_A_real, A_imag, C_real, C_imag, log_dt, D_skip):
        L = u.shape[1]
        dt = torch.exp(log_dt)
        A = -torch.exp(log_A_real) + 1j * A_imag
        C = (C_real + 1j * C_imag) * dt[:, None]
        pos = (lambda x, dt: x.to(dt))(torch.arange(L), log_dt.dtype)
        P = torch.exp((A * dt[:, None])[:, :, None] * pos[None, None, :])
        K = 2.0 * torch.einsum("dn,dnl->dl", C, P).real
        L2 = 2 * L
        u_t = (lambda x, *d: x.permute(*d))(u, 0, 2, 1)
        Kf = (lambda x, *a, **k: torch.fft.rfft(x.float(), *a, **k))(K, L2)
        Uf = (lambda x, *a, **k: torch.fft.rfft(x.float(), *a, **k))(u_t, L2)
        y = (lambda x, *a, **k: torch.fft.irfft(x, *a, **k).to(torch.bfloat16))(Uf * Kf[None, :, :], L2)[:, :, :L]
        y = (lambda x, *d: x.permute(*d))(y, 0, 2, 1)
        return y + u * D_skip[None, None, :]

    x = A_q
    g = _sigmoid((x * gate_w).sum(-1, keepdims=True))
    a = _A_ref(x, A_k, A_v, A_shift_k, A_ssm_k, A_ssm_D)
    b = _B_ref(x, B_log_A_real, B_A_imag, B_C_real, B_C_imag, B_log_dt, B_D_skip)
    return g * a + (1 - g) * b
```

```python
S = 2048; D = 640; N = 192
ROW = 4224
OFF_UQ  = 0
OFF_UKV = OFF_UQ  + D * ROW
OFF_KB0 = OFF_UKV + D * ROW
OFF_KB1 = OFF_KB0 + D * ROW
OFF_G   = OFF_KB1 + D * ROW
WS_USED = OFF_G + S * 4
KA = dict(q=0, k=8, v=16, shift_k=24, ssm_k=32, ssm_D=40, u=48, logA=56, Aim=64, Cre=72, Cim=80,
          log_dt=88, D_skip=96, gate_w=104, out=112, dbg=120, ws=128)

class Asm:
    def __init__(self):
        self.l = []
    def __call__(self, s=''):
        for x in s.split('\n'):
            x = x.strip()
            if not x: continue
            if x.endswith(':') or x.startswith('.') or x.startswith(';'):
                self.l.append(x)
            else:
                self.l.append('    ' + x)
    def text(self):
        return '\n'.join(self.l) + '\n'
    def srd(self, r, base, size, off=0):
        if off:
            self(f's_add_u32 s{r}, s{base}, {off}')
            self(f's_addc_u32 s{r+1}, s{base+1}, 0')
        else:
            self(f's_mov_b32 s{r}, s{base}')
            self(f's_mov_b32 s{r+1}, s{base+1}')
        self(f's_mov_b32 s{r+2}, {size}')
        self(f's_mov_b32 s{r+3}, 0x00020000')

def kdesc(name, vgpr, sgpr=96, agpr=0):
    acc = (vgpr + 3) // 4 * 4
    return f'''.amdhsa_kernel {name}
  .amdhsa_next_free_vgpr {acc + agpr if agpr else vgpr}
  .amdhsa_next_free_sgpr {sgpr}
  .amdhsa_accum_offset {acc}
  .amdhsa_group_segment_fixed_size 0
  .amdhsa_kernarg_size 136
  .amdhsa_user_sgpr_count 2
  .amdhsa_user_sgpr_kernarg_segment_ptr 1
  .amdhsa_system_sgpr_workgroup_id_x 1
  .amdhsa_float_denorm_mode_32 3
.end_amdhsa_kernel
'''
def khead(name):
    return f'.globl {name}\n.p2align 8\n.type {name},@function\n{name}:\n'
```

```python
from common import *

LOG2E = '0x3fb8aa3b'
LOG2E_LO = '0x32a57060'
LN2 = '0x3f317218'
NT = 320
K1_LDS = 16896

def cmul(a, d, x, y, t=46):
    a(f'v_pk_mul_f32 v[{t}:{t+1}], v[{x}:{x+1}], v[{y}:{y+1}] op_sel:[1,1] op_sel_hi:[1,0] neg_lo:[1,0]')
    a(f'v_pk_fma_f32 v[{d}:{d+1}], v[{x}:{x+1}], v[{y}:{y+1}], v[{t}:{t+1}] op_sel:[0,0,0] op_sel_hi:[0,1,1]')

def exp_bf16(a, v, t0, t1):
    a(f'v_mul_f32 v{t0}, s60, v{v}')
    a(f'v_fma_f32 v{t1}, v{v}, s60, -v{t0}')
    a(f'v_fmac_f32 v{t1}, s61, v{v}')
    a(f'v_exp_f32 v{t0}, v{t0}')
    a(f'v_mul_f32 v{t1}, s62, v{t1}')
    a(f'v_fma_f32 v{v}, v{t0}, v{t1}, v{t0}')
    a(f'v_cvt_pk_bf16_f32 v{v}, v{v}, v{v}')
    a(f'v_lshlrev_b32 v{v}, 16, v{v}')

def gen_k1(name='k1_kernel', prefetch=True):
    a = Asm()
    a.l.append(khead(name).rstrip())
    a(f'''
    s_cmp_ge_u32 s2, {NT + D}
    s_cbranch_scc1 L_k1_end
    s_cmp_ge_u32 s2, {NT}
    s_cbranch_scc1 L_k1_G
    ''')
    a(f'''
    s_load_dwordx4 s[4:7], s[0:1], {KA['q']}
    s_load_dwordx4 s[8:11], s[0:1], {KA['v']}
    s_load_dwordx2 s[12:13], s[0:1], {KA['ws']}
    s_mul_hi_u32 s36, s2, 429496730
    s_mul_i32 s37, s36, 10
    s_sub_u32 s37, s2, s37
    v_lshrrev_b32 v5, 5, v0
    v_and_b32 v6, 31, v0
    s_lshl_b32 s38, s36, 6
    v_lshl_add_u32 v5, v5, 3, s38          ; t0
    s_lshl_b32 s39, s37, 6
    v_lshl_add_u32 v6, v6, 1, s39          ; c
    v_mul_u32_u24 v1, 1280, v5
    v_lshl_add_u32 v1, v6, 1, v1
    v_subrev_u32 v2, 3840, v1
    v_lshlrev_b32 v4, 3, v6
    v_mul_u32_u24 v3, {ROW}, v6
    v_lshlrev_b32 v5, 1, v5
    v_sub_u32 v3, v3, v5
    v_add_u32 v3, 4080, v3
    s_movk_i32 s40, 5120
    s_mov_b32 s41, {OFF_UKV}
    s_movk_i32 s42, {ROW}
    s_mov_b32 s43, {OFF_UKV + ROW}
    s_waitcnt lgkmcnt(0)
    ''')
    a.srd(16, 4, S * D * 2); a.srd(20, 6, S * D * 2); a.srd(24, 8, S * D * 2); a.srd(28, 10, D * 8); a.srd(32, 12, WS_USED)
    for j in range(3):
        a(f'buffer_load_dword v{8+j}, v2, s[20:23], 0 offen offset:{1280*j}')
    for i in range(8):
        so = '0' if i < 4 else 's40'
        a(f'buffer_load_dword v{11+i}, v1, s[20:23], {so} offen offset:{1280*(i%4)}')
    a('buffer_load_dwordx4 v[36:39], v4, s[28:31], 0 offen')
    for i in range(8):
        so = '0' if i < 4 else 's40'
        a(f'buffer_load_dword v{20+i}, v1, s[24:27], {so} offen offset:{1280*(i%4)}')
    for i in range(8):
        so = '0' if i < 4 else 's40'
        a(f'buffer_load_dword v{28+i}, v1, s[16:19], {so} offen offset:{1280*(i%4)}')
    a('s_mov_b32 s44, 0x05040100\ns_mov_b32 s45, 0x07060302\ns_mov_b32 s46, 0xffff0000')
    a('s_waitcnt vmcnt(16)')
    a('''
    v_lshlrev_b32 v40, 16, v36
    v_and_b32 v41, s46, v36
    v_lshlrev_b32 v42, 16, v37
    v_and_b32 v43, s46, v37
    v_lshlrev_b32 v44, 16, v38
    v_and_b32 v45, s46, v38
    v_lshlrev_b32 v46, 16, v39
    v_and_b32 v47, s46, v39
    ''')
    for ch in range(2):
        w = 40 + 4 * ch
        for j in range(11):
            if ch == 0: a(f'v_lshlrev_b32 v{48+j}, 16, v{8+j}')
            else:       a(f'v_and_b32 v{48+j}, s46, v{8+j}')
        for i in range(8):
            a(f'v_mul_f32 v{60+i}, v{w}, v{48+i+3}')
        for m in range(1, 4):
            for i in range(8):
                a(f'v_fmac_f32 v{60+i}, v{w+m}, v{48+i+3-m}')
        if ch == 0: a('s_waitcnt vmcnt(8)')
        for i in range(8):
            if ch == 0: a(f'v_lshlrev_b32 v{48+i}, 16, v{20+i}')
            else:       a(f'v_and_b32 v{48+i}, s46, v{20+i}')
        for i in range(8):
            a(f'v_mul_f32 v{60+i}, v{60+i}, v{48+i}')
        pk = 68 + 8 * ch
        for m in range(4):
            a(f'v_cvt_pk_bf16_f32 v{pk+m}, v{60+7-2*m}, v{60+6-2*m}')
        so = 's41' if ch == 0 else 's43'
        a(f'buffer_store_dwordx4 v[{pk}:{pk+3}], v3, s[32:35], {so} offen')
    a('s_waitcnt vmcnt(2)')
    for ch in range(2):
        pk = 72 + 8 * ch
        sel = 's44' if ch == 0 else 's45'
        for m in range(4):
            a(f'v_perm_b32 v{pk+m}, v{28+6-2*m}, v{28+7-2*m}, {sel}')
        so = '0' if ch == 0 else 's42'
        a(f'buffer_store_dwordx4 v[{pk}:{pk+3}], v3, s[32:35], {so} offen')
    a('s_endpgm')
    a(f'''
    L_k1_G:
    s_sub_u32 s50, s2, {NT}                 ; d
    v_lshrrev_b32 v1, 6, v0
    s_load_dwordx8 s[4:11], s[0:1], {KA['logA']}
    s_load_dwordx4 s[12:15], s[0:1], {KA['log_dt']}
    s_load_dwordx2 s[44:45], s[0:1], {KA['ws']}
    v_readfirstlane_b32 s51, v1
    s_mov_b32 s60, {LOG2E}
    s_mov_b32 s61, {LOG2E_LO}
    s_mov_b32 s62, {LN2}
    s_cmp_eq_u32 s51, 3
    s_cbranch_scc1 L_k1_G3
    s_mul_i32 s52, s50, {N*2}
    v_lshl_add_u32 v1, v0, 1, s52
    s_lshl_b32 s53, s50, 1
    v_mov_b32 v7, s53
    s_mul_i32 s54, s51, 4608
    s_mov_b32 m0, s54
    v_and_b32 v8, 15, v0
    v_bfe_u32 v9, v0, 4, 2
    v_mul_u32_u24 v50, 288, v8
    v_lshl_add_u32 v50, v9, 4, v50
    v_add_u32 v50, s54, v50
    s_waitcnt lgkmcnt(0)
    ''')
    a.srd(16, 4, D*N*2); a.srd(20, 6, D*N*2); a.srd(24, 8, D*N*2); a.srd(28, 10, D*N*2)
    a.srd(32, 12, D*2); a.srd(36, 14, D*2); a.srd(40, 44, WS_USED)
    a('''
    buffer_load_ushort v6, v7, s[32:35], 0 offen      ; log_dt
    buffer_load_ushort v2, v1, s[16:19], 0 offen      ; logA
    buffer_load_ushort v3, v1, s[20:23], 0 offen      ; Aim
    buffer_load_ushort v4, v1, s[24:27], 0 offen      ; Cre
    buffer_load_ushort v5, v1, s[28:31], 0 offen      ; Cim
    buffer_load_ushort v96, v7, s[36:39], 0 offen     ; D_skip
    s_waitcnt vmcnt(5)
    v_lshlrev_b32 v6, 16, v6
    ''')
    exp_bf16(a, 6, 8, 9)
    a('s_waitcnt vmcnt(4)\nv_lshlrev_b32 v2, 16, v2')
    exp_bf16(a, 2, 8, 9)
    a('''
    s_waitcnt vmcnt(1)
    v_lshlrev_b32 v3, 16, v3
    v_lshlrev_b32 v4, 16, v4
    v_lshlrev_b32 v5, 16, v5
    v_mul_f32 v2, v2, v6                  ; ar*dt
    v_mul_f32 v3, v3, v6                  ; ai*dt
    v_add_f32 v6, v6, v6                  ; 2*dt
    v_mul_f32 v2, 0xbfb8aa3b, v2
    v_mul_f32 v3, 0.15915494, v3
    v_mul_f32 v4, v4, v6
    v_mul_f32 v5, v5, v6                  ; C' = 2*dt*C
    ''')
    def seed(dst, P):
        a(f'v_mul_f32 v8, {float(P)}, v2' if P <= 4 else f'v_mul_f32 v8, {hex(fbits(P))}, v2')
        a(f'v_mul_f32 v9, {float(P)}, v3' if P <= 4 else f'v_mul_f32 v9, {hex(fbits(P))}, v3')
        a('v_exp_f32 v8, v8')
        a('v_fract_f32 v9, v9')
        a(f'v_cos_f32 v{dst}, v9')
        a(f'v_sin_f32 v{dst+1}, v9')
        a('s_nop 0')
        a(f'v_pk_mul_f32 v[{dst}:{dst+1}], v[{dst}:{dst+1}], v[8:9] op_sel_hi:[1,0]')
    seed(12, 1); seed(18, 8); seed(20, 128); seed(28, 1024)
    W1, W2, W4, W8, W128, W256, W512, W768, W1024 = 12, 14, 16, 18, 20, 22, 24, 26, 28
    R3, R5, R6, R7, Q2, Q4, Q6, TMP = 30, 32, 34, 36, 38, 40, 42, 44
    def emit(x, row, neg=False):
        a(f'v_cvt_pk_bf16_f32 v48, v{x}, {"-" if neg else ""}v{x+1}')
        a(f'ds_write_addtid_b32 v48 offset:{row*288}')
    def emit_one(row):
        a('v_mov_b32 v48, 0x00003f80')
        a(f'ds_write_addtid_b32 v48 offset:{row*288}')
    emit(4, 0, True)
    cmul(a, TMP, 4, W8); emit(TMP, 1, True)
    for b in range(2, 16):
        cmul(a, TMP, TMP, W8); emit(TMP, b, True)
    for s in range(4):
        a(f'ds_read_b128 v[{52+4*s}:{55+4*s}], v50 offset:{64*s}')
    cmul(a, W2, W1, W1); cmul(a, W4, W2, W2)
    cmul(a, R3, W2, W1); cmul(a, R5, W4, W1); cmul(a, R6, W4, W2); cmul(a, R7, W4, R3)
    emit_one(0)
    for r, x in enumerate([W1, W2, R3, W4, R5, R6, R7], start=1):
        emit(x, r)
    emit(W128, 8)
    for r, x, keep in [(1, W1, None), (2, W2, Q2), (3, R3, None), (4, W4, Q4), (5, R5, None), (6, R6, Q6), (7, R7, None)]:
        dd = keep if keep else TMP
        cmul(a, dd, x, W128); emit(dd, 8 + r)
    for s in range(4):
        a(f'ds_read_b128 v[{68+4*s}:{71+4*s}], v50 offset:{64*s}')
    cmul(a, W256, W128, W128); cmul(a, W512, W256, W256); cmul(a, W768, W512, W256)
    a('s_waitcnt lgkmcnt(0)')
    def mf(tile):
        for s in range(4):
            c = '0' if s == 0 else f'v[{84+4*tile}:{87+4*tile}]'
            a(f'v_mfma_f32_16x16x32_bf16 v[{84+4*tile}:{87+4*tile}], v[{68+4*s}:{71+4*s}], v[{52+4*s}:{55+4*s}], {c}')
    mf(0)
    emit(W256, 0)
    for r, x in [(1, W2), (2, W4), (3, R6)]:
        cmul(a, TMP, x, W256); emit(TMP, r)
    for r, x in [(0, W128), (1, Q2), (2, Q4), (3, Q6)]:
        cmul(a, TMP, x, W256); emit(TMP, 4 + r)
    emit(W512, 8)
    cmul(a, TMP, W4, W512); emit(TMP, 9)
    cmul(a, TMP, W128, W512); emit(TMP, 10)
    cmul(a, TMP, Q4, W512); emit(TMP, 11)
    emit(W768, 12)
    cmul(a, TMP, W4, W768); emit(TMP, 13)
    cmul(a, TMP, W128, W768); emit(TMP, 14)
    cmul(a, TMP, Q4, W768); emit(TMP, 15)
    for s in range(4):
        a(f'ds_read_b128 v[{68+4*s}:{71+4*s}], v50 offset:{64*s}')
    a(f'v_cvt_pk_bf16_f32 v30, v{W1024}, v{W1024+1}')
    for r in range(1, 9):
        cmul(a, W1024, W1024, W128)
        a(f'v_cvt_pk_bf16_f32 v{30+r}, v{W1024}, v{W1024+1}')
    a('s_waitcnt lgkmcnt(0)')
    mf(1)
    for r in range(9):
        a(f'ds_write_addtid_b32 v{30+r} offset:{r*288}')
    for s in range(4):
        a(f'ds_read_b128 v[{68+4*s}:{71+4*s}], v50 offset:{64*s}')
    a('s_waitcnt lgkmcnt(0)')
    mf(2)
    a('''
    v_and_b32 v8, 63, v0
    v_lshlrev_b32 v8, 4, v8
    v_add_u32 v8, s54, v8
    s_nop 7
    ds_write_b128 v8, v[84:87]
    ds_write_b128 v8, v[88:91] offset:1024
    ds_write_b128 v8, v[92:95] offset:2048
    s_waitcnt lgkmcnt(0)
    s_barrier
    v_and_b32 v8, 63, v0
    v_lshlrev_b32 v8, 4, v8
    s_lshl_b32 s55, s51, 10
    v_add_u32 v8, s55, v8
    ds_read_b128 v[12:15], v8
    ds_read_b128 v[16:19], v8 offset:4608
    ds_read_b128 v[20:23], v8 offset:9216
    s_waitcnt lgkmcnt(0)
    v_pk_add_f32 v[12:13], v[12:13], v[16:17]
    v_pk_add_f32 v[14:15], v[14:15], v[18:19]
    v_pk_add_f32 v[12:13], v[12:13], v[20:21]
    v_pk_add_f32 v[14:15], v[14:15], v[22:23]
    ds_write_b128 v8, v[12:15] offset:13824
    s_waitcnt lgkmcnt(0)
    s_branch L_k1_join
    ''')
    a(f'''
    L_k1_G3:
    s_load_dwordx2 s[64:65], s[0:1], {KA['q']}
    s_load_dwordx2 s[66:67], s[0:1], {KA['gate_w']}
    s_load_dwordx2 s[68:69], s[0:1], {KA['ssm_k']}
    s_waitcnt lgkmcnt(0)
    ''')
    a.srd(16, 64, S*D*2); a.srd(20, 66, D*2); a.srd(24, 68, S*D*2); a.srd(36, 14, D*2); a.srd(40, 44, WS_USED)
    a(f'''
    s_lshl_b32 s53, s50, 1
    v_mov_b32 v7, s53
    buffer_load_ushort v96, v7, s[36:39], 0 offen
    v_and_b32 v1, 63, v0
    v_lshlrev_b32 v1, 2, v1
    s_cmp_ge_u32 s50, 512
    s_cbranch_scc1 L_k1_nogate
    s_mul_i32 s52, s50, {4*1280}
    v_add_u32 v2, s52, v1
    s_movk_i32 s56, 2560
    ''')
    for i in range(5):
        a(f'buffer_load_dword v{8+i}, v1, s[20:23], 0 offen offset:{256*i}')
    for r in range(4):
        so = '0' if r < 2 else 's56'
        for i in range(5):
            a(f'buffer_load_dword v{16+5*r+i}, v2, s[16:19], {so} offen offset:{1280*(r%2)+256*i}')
    a('s_waitcnt vmcnt(0)')
    for r in range(4):
        a(f'v_mov_b32 v{40+r}, 0')
    for i in range(5):
        for r in range(4):
            a(f'v_dot2_f32_bf16 v{40+r}, v{16+5*r+i}, v{8+i}, v{40+r}')
    a('s_nop 2')
    for ctrl in ['row_shr:1 row_mask:0xf', 'row_shr:2 row_mask:0xf', 'row_shr:4 row_mask:0xf', 'row_shr:8 row_mask:0xf', 'row_bcast:15 row_mask:0xa', 'row_bcast:31 row_mask:0xc']:
        for r in range(4):
            a(f'v_add_f32_dpp v{40+r}, v{40+r}, v{40+r} {ctrl} bank_mask:0xf')
    for r in range(4):
        a(f'v_cvt_pk_bf16_f32 v{40+r}, v{40+r}, v{40+r}')
    for r in range(4):
        a(f'v_lshlrev_b32 v{40+r}, 16, v{40+r}')
    for r in range(4):
        a(f'v_mul_f32 v{40+r}, 0xbfb8aa3b, v{40+r}')
    for r in range(4):
        a(f'v_exp_f32 v{40+r}, v{40+r}')
    for r in range(4):
        a(f'v_add_f32 v{40+r}, 1.0, v{40+r}')
    for r in range(4):
        a(f'v_rcp_f32 v{40+r}, v{40+r}')
    for r in range(4):
        a(f'v_cvt_pk_bf16_f32 v{40+r}, v{40+r}, v{40+r}')
    for r in range(4):
        a(f'v_lshlrev_b32 v{40+r}, 16, v{40+r}')
    a(f'''
    s_lshl_b32 s52, s50, 4
    s_add_u32 s52, s52, {OFF_G}
    v_mov_b32 v3, s52
    s_mov_b32 s58, 0
    s_mov_b32 s59, 0x80000000
    s_mov_b64 exec, s[58:59]
    buffer_store_dwordx4 v[40:43], v3, s[40:43], 0 offen
    s_mov_b64 exec, -1
    L_k1_nogate:
    ''')
    if prefetch:
        a('''
        s_lshl_b32 s52, s50, 12
        v_lshlrev_b32 v2, 2, v1
        v_add_u32 v2, s52, v2
        buffer_load_dwordx4 v[52:55], v2, s[24:27], 0 offen
        buffer_load_dwordx4 v[56:59], v2, s[24:27], 0 offen offset:1024
        buffer_load_dwordx4 v[60:63], v2, s[24:27], 0 offen offset:2048
        buffer_load_dwordx4 v[64:67], v2, s[24:27], 0 offen offset:3072
        ''')
    a('s_barrier')
    FT = 13824
    a('L_k1_join:\ns_barrier')
    def region(rg):
        if rg == 0:
            a(f'''
            v_lshrrev_b32 v8, 4, v0
            v_and_b32 v9, 15, v0
            v_lshl_add_u32 v9, v8, 5, v9
            v_lshlrev_b32 v9, 4, v9             ; 16*(b+32a)
            v_add_u32 v10, 1, v0
            v_lshrrev_b32 v8, 4, v10
            v_and_b32 v10, 15, v10
            v_lshl_add_u32 v10, v8, 5, v10
            v_lshlrev_b32 v10, 4, v10
            v_cmp_eq_u32 vcc, 31, v0
            v_mov_b32 v8, 1024
            s_nop 0
            v_cndmask_b32 v10, v10, v8, vcc
            ds_read_b128 v[12:15], v9 offset:{FT}
            ds_read_b128 v[16:19], v9 offset:{FT+256}
            ds_read_b32 v20, v10 offset:{FT}
            s_waitcnt lgkmcnt(0)
            ''')
        elif rg == 1:
            a(f'''
            v_subrev_u32 v9, 32, v0
            v_lshlrev_b32 v9, 4, v9             ; 16*(b+16a)
            v_add_u32 v10, 16, v9
            v_cmp_eq_u32 vcc, 63, v0
            v_mov_b32 v8, 512
            s_nop 0
            v_cndmask_b32 v10, v10, v8, vcc
            ds_read_b128 v[24:27], v9 offset:{FT+1024}
            ds_read_b32 v20, v10 offset:{FT+1024}
            s_waitcnt lgkmcnt(0)
            v_mov_b32 v12, v24
            v_mov_b32 v13, v24
            v_mov_b32 v14, v25
            v_mov_b32 v15, v26
            v_mov_b32 v16, v26
            v_mov_b32 v17, v26
            v_mov_b32 v18, v27
            v_mov_b32 v19, v20
            ''')
        elif rg == 2:
            def ad(dst, src):
                a(f'''
                v_lshrrev_b32 v8, 4, v{src}          ; a
                v_and_b32 v{dst}, 15, v{src}         ; b
                v_lshrrev_b32 v11, 1, v8
                v_lshl_add_u32 v{dst}, v11, 4, v{dst}
                v_lshlrev_b32 v{dst}, 4, v{dst}
                v_and_b32 v8, 1, v8
                v_lshl_add_u32 v{dst}, v8, 3, v{dst}
                ''')
            a('v_subrev_u32 v21, 64, v0\nv_add_u32 v22, 1, v21')
            ad(9, 21); ad(10, 22)
            a(f'''
            v_cmp_eq_u32 vcc, 127, v0
            v_mov_b32 v8, 512
            s_nop 0
            v_cndmask_b32 v10, v10, v8, vcc
            ds_read_b64 v[24:25], v9 offset:{FT+1024+512}
            ds_read_b32 v20, v10 offset:{FT+1024+512}
            s_waitcnt lgkmcnt(0)
            v_mov_b32 v12, v24
            v_mov_b32 v13, v24
            v_mov_b32 v14, v24
            v_mov_b32 v15, v25
            v_mov_b32 v16, v25
            v_mov_b32 v17, v25
            v_mov_b32 v18, v20
            v_mov_b32 v19, v20
            ''')
        else:
            def ad(dst, src):
                a(f'''
                v_lshrrev_b32 v8, 4, v{src}          ; a
                v_and_b32 v{dst}, 15, v{src}         ; b
                v_lshrrev_b32 v11, 2, v8
                v_lshl_add_u32 v{dst}, v11, 4, v{dst}
                v_lshlrev_b32 v{dst}, 4, v{dst}
                v_and_b32 v8, 3, v8
                v_lshl_add_u32 v{dst}, v8, 2, v{dst}
                ''')
            a('v_subrev_u32 v21, 128, v0\nv_add_u32 v22, 1, v21')
            ad(9, 21); ad(10, 22)
            a(f'''
            ds_read_b32 v24, v9 offset:{FT+2048}
            ds_read_b32 v20, v10 offset:{FT+2048}
            v_and_b32 v8, 1, v0
            v_cmp_eq_u32 vcc, 0, v8
            s_waitcnt lgkmcnt(0)
            v_mov_b32 v12, v24
            v_mov_b32 v13, v24
            v_mov_b32 v14, v24
            v_mov_b32 v15, v24
            v_cndmask_b32 v16, v20, v24, vcc
            v_mov_b32 v17, v20
            v_mov_b32 v18, v20
            v_mov_b32 v19, v20
            ''')
    a('''
    s_cmp_eq_u32 s51, 0
    s_cbranch_scc0 L_k1_r23
    s_mov_b32 s58, -1
    s_mov_b32 s59, 0
    s_mov_b64 exec, s[58:59]
    ''')
    region(0)
    a('''
    s_mov_b32 s58, 0
    s_mov_b32 s59, -1
    s_mov_b64 exec, s[58:59]
    ''')
    region(1)
    a('''
    s_mov_b64 exec, -1
    s_waitcnt vmcnt(0)
    v_lshlrev_b32 v96, 16, v96
    v_cmp_eq_u32 vcc, 0, v0
    v_mov_b32 v8, 0
    s_nop 0
    v_cndmask_b32 v96, v8, v96, vcc
    v_add_f32 v12, v12, v96
    s_branch L_k1_pack
    L_k1_r23:
    s_cmp_eq_u32 s51, 1
    s_cbranch_scc0 L_k1_r3
    ''')
    region(2)
    a('s_branch L_k1_pack\nL_k1_r3:')
    region(3)
    a('L_k1_pack:')
    for m in range(4):
        a(f'v_cvt_pk_bf16_f32 v{24+m}, v{12+2*m}, v{13+2*m}')
    for m in range(4):
        a(f'v_cvt_pk_bf16_f32 v{28+m}, v{13+2*m}, v{14+2*m}')
    a(f'''
    s_mul_i32 s52, s50, {ROW}
    s_add_u32 s53, s52, {OFF_KB0}
    s_add_u32 s52, s52, {OFF_KB1}
    v_lshlrev_b32 v1, 4, v0
    buffer_store_dwordx4 v[24:27], v1, s[40:43], s53 offen
    buffer_store_dwordx4 v[28:31], v1, s[40:43], s52 offen
    L_k1_end:
    s_endpgm
    ''')
    return a.text(), kdesc(name, 100, 96)

import struct
def fbits(x):
    return struct.unpack('<I', struct.pack('<f', float(x)))[0]
```

```python
from common import *

KC = 4160
UOFF = 4 * KC
SLOT = UOFF + 4576
GOFF = 6 * SLOT
XOFF = GOFF + 8192
K2_LDS = XOFF + 4 * 5120
SETE = [7, 6, 2]; SETO = [5, 4, 3, 1, 0]
ASET = [40, 104]; FSET = [72, 136]
VA, VF, VL, VT = 168, 169, 170, 171

def unit_loads(s, nA, nF):
    L = []
    n = max(nA, nF)
    for i in range(n):
        if i < nF: L.append(f'ds_read_b128 v[{FSET[s]+4*i}:{FSET[s]+4*i+3}], v{VF} offset:{512*(7-i)}')
        if i < nA:
            L.append(f'ds_read_b64 v[{ASET[s]+4*i}:{ASET[s]+4*i+1}], v{VA} offset:{512*i}')
            L.append(f'ds_read_b64 v[{ASET[s]+4*i+2}:{ASET[s]+4*i+3}], v{VA} offset:{512*i+8}')
    return L
def unit_mfmas(s, tiles, acc):
    M = []
    for a_ in range(8):
        for c in tiles:
            if a_ <= c:
                r = acc[c]
                M.append(f'v_mfma_f32_16x16x32_bf16 v[{r}:{r+3}], v[{ASET[s]+4*a_}:{ASET[s]+4*a_+3}], v[{FSET[s]+4*(c-a_)}:{FSET[s]+4*(c-a_)+3}], v[{r}:{r+3}]')
    return M
def interleave(a, M, L, post=()):
    L = list(L); nm = len(M); nl = len(L)
    k = 0
    for i, m in enumerate(M):
        a(m)
        tgt = min(nl, ((i + 1) * nl * 4 + 3 * nm - 1) // (3 * nm)) if nl else 0
        while k < tgt:
            a(L[k]); k += 1
    while k < nl:
        a(L[k]); k += 1
    for p in post: a(p)

def gen_k2(name='k2_kernel', stamps=False, rt=False):
    a = Asm()
    a.l.append(khead(name).rstrip())
    def stamp(i):
        if stamps:
            a(f's_memtime s[{70+2*i}:{71+2*i}]')
    a(f'''
    s_cmp_ge_u32 s2, 256
    s_cbranch_scc1 L_k2_end
    ''')
    stamp(0)
    if rt: rt_begin(a)
    a(f'''
    s_load_dwordx4 s[4:7], s[0:1], {KA['ssm_k']}
    s_load_dwordx2 s[8:9], s[0:1], {KA['out']}
    s_load_dwordx2 s[10:11], s[0:1], {KA['ws']}
    v_lshrrev_b32 v1, 6, v0
    v_and_b32 v{VL}, 63, v0
    v_mov_b32 v{VT}, v0
    v_readfirstlane_b32 s32, v1
    s_and_b32 s36, s2, 7                   ; x
    s_lshr_b32 s37, s2, 3                  ; j
    s_lshr_b32 s38, s37, 2                 ; m
    s_and_b32 s39, s37, 3                  ; i
    s_mul_i32 s36, s36, 80
    s_mul_i32 s38, s38, 10
    s_add_u32 s36, s36, s38
    s_lshl_b32 s33, s39, 1
    s_add_u32 s33, s33, s36                ; c0
    s_lshr_b32 s34, s39, 1
    s_add_u32 s34, s34, s36
    s_add_u32 s34, s34, 8                  ; cs
    s_and_b32 s35, s39, 1                  ; parity
    v_and_b32 v2, 15, v{VL}                ; i / col
    v_lshrrev_b32 v3, 4, v{VL}             ; kg
    v_add_u32 v4, 1, v2
    v_and_b32 v5, 3, v4                    ; copy j
    v_lshrrev_b32 v4, 2, v4                ; a_i
    v_mul_u32_u24 v5, {KC}, v5
    v_lshl_add_u32 v5, v4, 3, v5
    v_lshl_add_u32 v172, v3, 4, v5         ; laneA
    v_lshlrev_b32 v4, 5, v2
    v_sub_u32 v4, {UOFF + 480}, v4
    v_lshl_add_u32 v173, v3, 4, v4
    v_lshlrev_b32 v174, 4, v{VL}
    v_mov_b32 v8, 0
    v_mov_b32 v9, 0
    v_mov_b32 v10, 0
    v_mov_b32 v11, 0
    s_mul_i32 s40, s32, {SLOT}
    s_add_u32 s41, s40, {UOFF + 4096}
    v_add_u32 v6, s41, v174
    v_cmp_gt_u32 vcc, 30, v{VL}
    s_and_saveexec_b64 s[42:43], vcc
    ds_write_b128 v6, v[8:11]
    s_cmp_lt_u32 s32, 2
    s_cbranch_scc0 L_k2_notail2
    ds_write_b128 v6, v[8:11] offset:{4*SLOT - 0 if 4*SLOT < 65536 else 0}
    L_k2_notail2:
    s_mov_b64 exec, s[42:43]
    s_waitcnt lgkmcnt(0)
    ''')
    assert 4 * SLOT >= 65536
    idx = [i for i, l in enumerate(a.l) if 'ds_write_b128 v6, v[8:11] offset:0' in l][0]
    a.l[idx] = f'    v_add_u32 v6, {4*SLOT}, v6\n    ds_write_b128 v6, v[8:11]'
    a.srd(16, 4, D * S * 2); a.srd(20, 6, D * 2); a.srd(24, 8, S * D * 2); a.srd(28, 10, WS_USED)
    a(f'''
    v_and_b32 v2, 15, v{VL}
    v_lshlrev_b32 v2, 1, v2
    s_sub_u32 s44, s32, 16
    v_add_u32 v2, s44, v2                   ; x0 (signed)
    v_max_i32 v3, 0, v2
    v_lshlrev_b32 v3, 1, v3
    v_add_u32 v4, 1, v2
    v_max_i32 v4, 0, v4
    v_lshlrev_b32 v4, 1, v4
    s_mul_i32 s45, s34, {ROW}               ; cs*ROW
    s_add_u32 s46, s45, {OFF_KB0}
    s_lshl_b32 s47, s34, 12                 ; cs*4096
    s_lshl_b32 s48, s34, 1
    v_mov_b32 v5, s48
    buffer_load_ushort v176, v3, s[28:31], s46 offen
    buffer_load_ushort v177, v4, s[28:31], s46 offen
    buffer_load_ushort v178, v3, s[16:19], s47 offen
    buffer_load_ushort v179, v4, s[16:19], s47 offen
    buffer_load_ushort v180, v5, s[20:23], 0 offen
    s_and_b32 s48, s32, 1
    s_mul_i32 s48, s48, {OFF_KB1 - OFF_KB0}
    s_lshr_b32 s49, s32, 1
    s_lshl_b32 s49, s49, 2
    s_add_u32 s48, s48, s49
    s_add_u32 s48, s48, s46
    s_mul_i32 s49, s32, {KC}
    s_add_u32 s50, s49, {4*SLOT + 32}
    s_mov_b32 m0, s50
    s_nop 0
    ''')
    for i in range(4):
        a(f'buffer_load_dwordx4 v174, s[28:31], s48 offen offset:{1024*i} lds')
    a(f'''
    s_lshl_b32 s48, s32, 10
    s_add_u32 s50, s48, {4*SLOT + UOFF}
    s_mov_b32 m0, s50
    s_add_u32 s51, s45, s48
    s_add_u32 s51, s51, {OFF_UQ}
    buffer_load_dwordx4 v174, s[28:31], s51 offen lds
    s_add_u32 s50, s49, {5*SLOT + 32}
    s_mov_b32 m0, s50
    s_lshl_b32 s51, s32, 1
    s_add_u32 s51, s51, s47
    ''')
    for i in range(4):
        a(f'buffer_load_dwordx4 v174, s[16:19], s51 offen offset:{1024*i} lds')
    a(f'''
    s_add_u32 s50, s48, {5*SLOT + UOFF}
    s_mov_b32 m0, s50
    s_add_u32 s51, s45, s48
    s_add_u32 s51, s51, {OFF_UKV}
    buffer_load_dwordx4 v174, s[28:31], s51 offen lds
    ; g : chunks 2w, 2w+1
    s_lshl_b32 s48, s32, 11
    s_add_u32 s50, s48, {GOFF}
    s_mov_b32 m0, s50
    s_add_u32 s51, s48, {OFF_G}
    buffer_load_dwordx4 v174, s[28:31], s51 offen lds
    buffer_load_dwordx4 v174, s[28:31], s51 offen offset:1024 lds
    ''')
    a(f'''
    s_lshr_b32 s52, s32, 1
    s_add_u32 s52, s52, s33
    s_and_b32 s53, s32, 1                   ; 1 = conv A
    s_mul_i32 s54, s52, {ROW}               ; co*ROW
    s_lshl_b32 s55, s52, 12                 ; co*4096
    s_cmp_eq_u32 s53, 1
    s_cselect_b32 s56, s16, s28
    s_cselect_b32 s57, s17, s29
    s_cselect_b32 s58, s18, s30
    s_mov_b32 s59, 0x00020000
    s_add_u32 s60, s54, {OFF_KB0}
    s_add_u32 s61, s54, {OFF_KB1}
    s_cmp_eq_u32 s53, 1
    s_cselect_b32 s60, s55, s60
    s_add_u32 s62, s55, 2
    s_cmp_eq_u32 s53, 1
    s_cselect_b32 s61, s62, s61
    s_add_u32 s62, s60, 4                   ; copy2
    s_add_u32 s63, s61, 4                   ; copy3
    v_and_b32 v2, 15, v{VL}
    v_lshlrev_b32 v2, 1, v2
    v_lshrrev_b32 v6, 4, v{VL}
    v_add_u32 v2, v2, v6
    v_subrev_u32 v181, 16, v2               ; x0
    v_max_i32 v3, 0, v181
    v_lshlrev_b32 v3, 1, v3
    v_add_u32 v4, 1, v181
    v_max_i32 v4, 0, v4
    v_lshlrev_b32 v4, 1, v4
    s_lshl_b32 s48, s52, 1
    v_mov_b32 v5, s48
    buffer_load_ushort v182, v3, s[56:59], s60 offen
    buffer_load_ushort v183, v4, s[56:59], s60 offen
    buffer_load_ushort v184, v5, s[20:23], 0 offen
    s_mul_i32 s64, s32, {SLOT}
    ''')
    for j in range(4):
        a(f's_add_u32 s50, s64, {j*KC + 32}\ns_mov_b32 m0, s50')
        a('s_nop 0')
        for i in range(4):
            a(f'buffer_load_dwordx4 v174, s[56:59], s{60+j} offen offset:{1024*i} lds')
    a(f'''
    s_add_u32 s50, s64, {UOFF}
    s_mov_b32 m0, s50
    s_cmp_eq_u32 s53, 1
    s_cselect_b32 s51, {OFF_UKV}, {OFF_UQ}
    s_add_u32 s51, s51, s54
    ''')
    for i in range(4):
        a(f'buffer_load_dwordx4 v174, s[28:31], s51 offen offset:{1024*i} lds')
    stamp(1)
    def patch(lo, hi, dreg, vx0, vaddr, t0=8, t1=9):
        a(f'''
        v_lshlrev_b32 v{lo}, 16, v{lo}
        v_lshlrev_b32 v{hi}, 16, v{hi}
        v_cmp_le_i32 vcc, 0, v{vx0}
        v_mov_b32 v{t0}, 0
        s_nop 0
        v_cndmask_b32 v{lo}, v{t0}, v{lo}, vcc
        v_cmp_le_i32 vcc, -1, v{vx0}
        s_nop 1
        v_cndmask_b32 v{hi}, v{t0}, v{hi}, vcc
        ''')
        if dreg is not None:
            a(f'''
            v_cmp_eq_u32 vcc, 0, v{vx0}
            s_nop 1
            v_cndmask_b32 v{t1}, v{t0}, v{dreg}, vcc
            v_add_f32 v{lo}, v{lo}, v{t1}
            v_cmp_eq_u32 vcc, -1, v{vx0}
            s_nop 1
            v_cndmask_b32 v{t1}, v{t0}, v{dreg}, vcc
            v_add_f32 v{hi}, v{hi}, v{t1}
            ''')
        a(f'v_cvt_pk_bf16_f32 v{lo}, v{lo}, v{hi}')
        a(f'ds_write_b32 v{vaddr}, v{lo}')
    a(f'''
    s_waitcnt vmcnt(23)
    v_and_b32 v2, 15, v{VL}
    v_lshlrev_b32 v3, 1, v2
    v_add_u32 v3, s44, v3                   ; x0
    s_add_u32 s50, s49, {4*SLOT}
    v_lshl_add_u32 v4, v2, 2, s50
    v_add_u32 v5, {SLOT}, v4
    v_lshlrev_b32 v180, 16, v180
    ''')
    patch(176, 177, None, 3, 4)
    patch(178, 179, 180, 3, 5)
    a('s_waitcnt lgkmcnt(0)\ns_barrier')
    stamp(2)
    for r in range(40): a(f'v_mov_b32 v{r}, 0')
    def own_patch():
        a(f'''
        s_waitcnt vmcnt(0)
        v_lshrrev_b32 v40, 4, v{VL}
        v_mul_u32_u24 v40, {KC}, v40
        v_and_b32 v41, 15, v{VL}
        v_lshl_add_u32 v40, v41, 2, v40
        v_add_u32 v42, s64, v40
        v_lshlrev_b32 v184, 16, v184
        s_cmp_eq_u32 s53, 1
        s_cselect_b32 s48, -1, 0
        v_and_b32 v184, s48, v184
        ''')
        patch(182, 183, 184, 181, 42, 43, 44)
    def s_phase(tiles):
        nA = max(tiles) + 1; nF = max(tiles) + 1
        accB = {c: 4 * i for i, c in enumerate(tiles)}
        accA = {c: 20 + 4 * i for i, c in enumerate(tiles)}
        a(f'''
        s_lshl_b32 s48, s32, 7
        s_add_u32 s50, s48, {4*SLOT}
        v_add_u32 v{VA}, s50, v172
        v_add_u32 v{VF}, s50, v173
        ''')
        for l in unit_loads(0, nA, nF): a(l)
        a(f'v_add_u32 v{VA}, 64, v{VA}\nv_add_u32 v{VF}, 64, v{VF}\ns_waitcnt lgkmcnt(0)')
        interleave(a, unit_mfmas(0, tiles, accB), unit_loads(1, nA, nF),
                   [f'v_add_u32 v{VA}, {SLOT-64}, v{VA}', f'v_add_u32 v{VF}, {SLOT-64}, v{VF}', 's_waitcnt lgkmcnt(0)'])
        interleave(a, unit_mfmas(1, tiles, accB), unit_loads(0, nA, nF),
                   [f'v_add_u32 v{VA}, 64, v{VA}', f'v_add_u32 v{VF}, 64, v{VF}', 's_waitcnt lgkmcnt(0)'])
        interleave(a, unit_mfmas(0, tiles, accA), unit_loads(1, nA, nF), ['s_waitcnt lgkmcnt(0)'])
        interleave(a, unit_mfmas(1, tiles, accA), [])
        own_patch()
        a(f'''
        v_and_b32 v40, 15, v{VL}
        v_lshrrev_b32 v41, 4, v{VL}
        v_lshlrev_b32 v40, 4, v40
        v_lshl_add_u32 v40, v41, 2, v40
        v_lshlrev_b32 v41, 2, v40
        v_add_u32 v41, {GOFF}, v41               ; g address
        v_lshlrev_b32 v42, 1, v40
        v_sub_u32 v42, {4*SLOT + UOFF + 2*2044}, v42
        s_mul_i32 s48, s32, 5120
        s_add_u32 s48, s48, {XOFF}
        v_add_u32 v43, s48, v174
        ''')
        for i, c in enumerate(tiles):
            a(f'ds_read_b128 v[{48+8*i}:{51+8*i}], v41 offset:{1024*c}')
            a(f'v_subrev_u32 v44, {512*c}, v42')
            a(f'ds_read_b64 v[{52+8*i}:{53+8*i}], v44')
        a('s_mov_b32 s46, 0xffff0000')
        a('s_waitcnt lgkmcnt(0)')
        for i, c in enumerate(tiles):
            g = 48 + 8 * i; q = 52 + 8 * i; yb = accB[c]; ya = accA[c]
            a(f'''
            v_and_b32 v96, s46, v{q+1}
            v_lshlrev_b32 v97, 16, v{q+1}
            v_and_b32 v98, s46, v{q}
            v_lshlrev_b32 v99, 16, v{q}
            v_pk_fma_f32 v[96:97], v[96:97], v[{ya}:{ya+1}], v[{yb}:{yb+1}] neg_lo:[0,0,1] neg_hi:[0,0,1]
            v_pk_fma_f32 v[98:99], v[98:99], v[{ya+2}:{ya+3}], v[{yb+2}:{yb+3}] neg_lo:[0,0,1] neg_hi:[0,0,1]
            v_pk_fma_f32 v[100:101], v[{g}:{g+1}], v[96:97], v[{yb}:{yb+1}]
            v_pk_fma_f32 v[102:103], v[{g+2}:{g+3}], v[98:99], v[{yb+2}:{yb+3}]
            ds_write_b128 v43, v[100:103] offset:{1024*i}
            ''')
        a('s_waitcnt lgkmcnt(0)\ns_barrier')
        a(f'''
        v_and_b32 v40, 15, v{VL}
        v_lshrrev_b32 v41, 4, v{VL}
        v_lshlrev_b32 v40, 4, v40
        v_lshl_add_u32 v40, v41, 2, v40          ; T0
        v_mul_u32_u24 v40, 1280, v40
        s_lshl_b32 s48, s34, 1
        v_add_u32 v40, s48, v40
        ''')
        for rnd in range((len(tiles) + 3) // 4):
            cand = tiles[4*rnd:4*rnd+4]
            lab = f'L_k2_sred_{tiles[0]}_{rnd}'
            a(f's_cmp_lt_u32 s32, {len(cand)}\ns_cbranch_scc0 {lab}')
            a(f's_mov_b32 s50, {cand[0]}')
            for w in range(1, len(cand)):
                a(f's_cmp_eq_u32 s32, {w}\ns_cselect_b32 s50, {cand[w]}, s50')
            a(f'''
            s_mul_i32 s50, s50, {256*1280}
            s_lshl_b32 s48, s32, 10
            s_add_u32 s48, s48, {XOFF + 4096*rnd}
            v_add_u32 v43, s48, v174
            ds_read_b128 v[48:51], v43
            ds_read_b128 v[52:55], v43 offset:5120
            ds_read_b128 v[56:59], v43 offset:10240
            ds_read_b128 v[60:63], v43 offset:15360
            s_waitcnt lgkmcnt(0)
            v_pk_add_f32 v[48:49], v[48:49], v[52:53]
            v_pk_add_f32 v[50:51], v[50:51], v[54:55]
            v_pk_add_f32 v[56:57], v[56:57], v[60:61]
            v_pk_add_f32 v[58:59], v[58:59], v[62:63]
            v_pk_add_f32 v[48:49], v[48:49], v[56:57]
            v_pk_add_f32 v[50:51], v[50:51], v[58:59]
            v_cvt_pk_bf16_f32 v48, v48, v49
            v_cvt_pk_bf16_f32 v50, v50, v51
            buffer_store_short v48, v40, s[24:27], s50 offen
            buffer_store_short_d16_hi v48, v40, s[24:27], s50 offen offset:1280
            buffer_store_short v50, v40, s[24:27], s50 offen offset:2560
            buffer_store_short_d16_hi v50, v40, s[24:27], s50 offen offset:3840
            {lab}:
            ''')
    a('s_cmp_eq_u32 s35, 0\ns_cbranch_scc0 L_k2_sO')
    s_phase(SETE)
    a('s_branch L_k2_sdone\nL_k2_sO:')
    s_phase(SETO)
    a('L_k2_sdone:')
    stamp(3)
    stamp(4)
    for r in range(32): a(f'v_mov_b32 v{r}, 0')
    acc = {c: 4 * c for c in range(8)}
    tiles = list(range(8))
    a(f'''
    v_add_u32 v{VA}, s64, v172
    v_add_u32 v{VF}, s64, v173
    s_waitcnt lgkmcnt(0)
    ''')
    for l in unit_loads(0, 8, 8): a(l)
    bump = [f'v_add_u32 v{VA}, 64, v{VA}', f'v_add_u32 v{VF}, 64, v{VF}']
    for b in bump: a(b)
    a('s_mov_b32 s66, 0\ns_waitcnt lgkmcnt(0)\nL_k2_main:')
    interleave(a, unit_mfmas(0, tiles, acc), unit_loads(1, 8, 8), bump + ['s_waitcnt lgkmcnt(0)'])
    interleave(a, unit_mfmas(1, tiles, acc), unit_loads(0, 8, 8), bump + ['s_add_u32 s66, s66, 1', 's_cmp_lt_u32 s66, 4', 's_waitcnt lgkmcnt(0)'])
    a('s_cbranch_scc1 L_k2_main')
    stamp(5)
    a(f'''
    s_nop 7
    v_add_u32 v40, s64, v174
    ''')
    for c in range(8):
        a(f'ds_write_b128 v40, v[{4*c}:{4*c+3}] offset:{1024*c}')
    a(f'''
    v_and_b32 v40, 15, v{VL}
    v_lshrrev_b32 v41, 4, v{VL}
    v_lshlrev_b32 v40, 4, v40
    v_lshl_add_u32 v40, v41, 2, v40
    s_lshl_b32 s48, s32, 9
    v_add_u32 v45, s48, v40                  ; t (tile 2w)
    v_lshlrev_b32 v41, 2, v45
    v_add_u32 v41, {GOFF}, v41               ; g address
    v_lshlrev_b32 v42, 1, v45
    v_sub_u32 v42, {UOFF + 2*2044}, v42
    v_mul_u32_u24 v46, 1280, v45
    s_lshl_b32 s49, s33, 1
    v_add_u32 v46, s49, v46
    s_lshl_b32 s48, s32, 11
    v_add_u32 v43, s48, v174
    s_mov_b32 s46, 0xffff0000
    s_mov_b32 s47, {256*1280}
    s_waitcnt lgkmcnt(0)
    s_barrier
    ''')
    stamp(6)
    for i in range(2):
        b = 48 + 28 * i
        a(f'''
        ds_read_b128 v[{b}:{b+3}], v43 offset:{1024*i}
        ds_read_b128 v[{b+4}:{b+7}], v43 offset:{SLOT + 1024*i}
        ds_read_b128 v[{b+8}:{b+11}], v43 offset:{2*SLOT + 1024*i}
        ds_read_b128 v[{b+16}:{b+19}], v41 offset:{1024*i}
        ''')
        a(f'v_add_u32 v44, {3*SLOT}, v43')
        a(f'ds_read_b128 v[{b+12}:{b+15}], v44 offset:{1024*i}')
        a(f'v_subrev_u32 v44, {512*i}, v42')
        a(f'ds_read_b64 v[{b+20}:{b+21}], v44')
        a(f'ds_read_b64 v[{b+22}:{b+23}], v44 offset:{2*SLOT}')
    for i in range(2):
        b = 48 + 28 * i
        a('s_waitcnt lgkmcnt(7)' if (i == 0 and not stamps) else 's_waitcnt lgkmcnt(0)')
        for ch in range(2):
            yb = b + 8 * ch; ya = yb + 4; g = b + 16; q = b + 20 + 2 * ch; o = 108 + 4 * ch
            a(f'''
            v_and_b32 v104, s46, v{q+1}
            v_lshlrev_b32 v105, 16, v{q+1}
            v_and_b32 v106, s46, v{q}
            v_lshlrev_b32 v107, 16, v{q}
            v_pk_fma_f32 v[104:105], v[104:105], v[{ya}:{ya+1}], v[{yb}:{yb+1}] neg_lo:[0,0,1] neg_hi:[0,0,1]
            v_pk_fma_f32 v[106:107], v[106:107], v[{ya+2}:{ya+3}], v[{yb+2}:{yb+3}] neg_lo:[0,0,1] neg_hi:[0,0,1]
            v_pk_fma_f32 v[{o}:{o+1}], v[{g}:{g+1}], v[104:105], v[{yb}:{yb+1}]
            v_pk_fma_f32 v[{o+2}:{o+3}], v[{g+2}:{g+3}], v[106:107], v[{yb+2}:{yb+3}]
            ''')
        for r in range(4):
            a(f'v_cvt_pk_bf16_f32 v{116+4*i+r}, v{108+r}, v{112+r}')
        so = '0' if i == 0 else 's47'
        for r in range(4):
            a(f'buffer_store_dword v{116+4*i+r}, v46, s[24:27], {so} offen offset:{1280*r}')
    if stamps:
        stamp(7)
        a(f'''
        s_waitcnt vmcnt(0)
        s_memtime s[86:87]
        s_load_dwordx2 s[4:5], s[0:1], {KA['ws']}
        s_waitcnt lgkmcnt(0)
        s_add_u32 s4, s4, {16 << 20}
        s_addc_u32 s5, s5, 0
        s_mov_b32 s6, {1 << 20}
        s_mov_b32 s7, 0x00020000
        s_lshl_b32 s48, s2, 2
        s_add_u32 s48, s48, s32
        s_lshl_b32 s48, s48, 7
        v_lshlrev_b32 v1, 2, v{VL}
        v_add_u32 v1, s48, v1
        v_mov_b32 v2, 0
        ''')
        for i in range(9):
            a(f'v_mov_b32 v3, s{70+2*i}\nv_cmp_eq_u32 vcc, {i}, v{VL}\ns_nop 1\nv_cndmask_b32 v2, v2, v3, vcc')
        a(f'v_cmp_gt_u32 vcc, 16, v{VL}\ns_and_saveexec_b64 s[42:43], vcc\nbuffer_store_dword v2, v1, s[4:7], 0 offen')
    if rt: rt_end(a, 2)
    a('L_k2_end:\ns_endpgm')
    return a.text(), kdesc(name, 192, 100)
```

```python
import sys
from common import *
import k1, k2
def build(fn, stamps=False, prefetch=True):
    t1, d1 = k1.gen_k1(prefetch=prefetch)
    t2, d2 = k2.gen_k2(stamps=stamps)
    s = f'; @launch kernel=k1_kernel grid=({k1.NT + D},1,1) block=(256,1,1) lds={k1.K1_LDS}\n'
    s += f'; @launch kernel=k2_kernel grid=(256,1,1) block=(256,1,1) lds={k2.K2_LDS}\n'
    s += '.amdgcn_target "amdgcn-amd-amdhsa--gfx950"\n.text\n' + t1 + t2
    s += '.section .rodata,"a"\n.p2align 6\n' + d1 + '.p2align 6\n' + d2
    open(fn, 'w').write(s)
if __name__ == '__main__':
    build(sys.argv[1], stamps=('stamps' in sys.argv))
```

```python
S = 2048; D = 640; N = 192
ROW = 4224
OFF_UQ  = 0
OFF_UKV = OFF_UQ  + D * ROW
OFF_KB0 = OFF_UKV + D * ROW
OFF_KB1 = OFF_KB0 + D * ROW
OFF_G   = OFF_KB1 + D * ROW
WS_USED = OFF_G + S * 4
KA = dict(q=0, k=8, v=16, shift_k=24, ssm_k=32, ssm_D=40, u=48, logA=56, Aim=64, Cre=72, Cim=80,
          log_dt=88, D_skip=96, gate_w=104, out=112, dbg=120, ws=128)

class Asm:
    def __init__(self):
        self.l = []
    def __call__(self, s=''):
        for x in s.split('\n'):
            x = x.strip()
            if not x: continue
            if x.endswith(':') or x.startswith('.') or x.startswith(';'):
                self.l.append(x)
            else:
                self.l.append('    ' + x)
    def text(self):
        return '\n'.join(self.l) + '\n'
    def srd(self, r, base, size, off=0):
        if off:
            self(f's_add_u32 s{r}, s{base}, {off}')
            self(f's_addc_u32 s{r+1}, s{base+1}, 0')
        else:
            self(f's_mov_b32 s{r}, s{base}')
            self(f's_mov_b32 s{r+1}, s{base+1}')
        self(f's_mov_b32 s{r+2}, {size}')
        self(f's_mov_b32 s{r+3}, 0x00020000')

def kdesc(name, vgpr, sgpr=96, agpr=0):
    acc = (vgpr + 3) // 4 * 4
    return f'''.amdhsa_kernel {name}
  .amdhsa_next_free_vgpr {acc + agpr if agpr else vgpr}
  .amdhsa_next_free_sgpr {sgpr}
  .amdhsa_accum_offset {acc}
  .amdhsa_group_segment_fixed_size 0
  .amdhsa_kernarg_size 136
  .amdhsa_user_sgpr_count 2
  .amdhsa_user_sgpr_kernarg_segment_ptr 1
  .amdhsa_system_sgpr_workgroup_id_x 1
  .amdhsa_float_denorm_mode_32 3
.end_amdhsa_kernel
'''
def khead(name):
    return f'.globl {name}\n.p2align 8\n.type {name},@function\n{name}:\n'

def rt_begin(a, sreg=90):
    a(f's_memrealtime s[{sreg}:{sreg+1}]')
def rt_end(a, slot, sreg=90, vtmp=1, every_wave=True):
    a(f'''
    s_waitcnt vmcnt(0) lgkmcnt(0)
    s_memrealtime s[{sreg+2}:{sreg+3}]
    s_load_dwordx2 s[{sreg+4}:{sreg+5}], s[0:1], {KA['dbg']}
    s_waitcnt lgkmcnt(0)
    s_not_b32 s{sreg}, s{sreg}
    v_mov_b32 v{vtmp}, {slot*8}
    v_mov_b32 v{vtmp+1}, s{sreg}
    v_mov_b32 v{vtmp+2}, s{sreg+2}
    s_mov_b64 exec, 1
    global_atomic_umax v{vtmp}, v{vtmp+1}, s[{sreg+4}:{sreg+5}]
    global_atomic_umax v{vtmp}, v{vtmp+2}, s[{sreg+4}:{sreg+5}] offset:4
    s_waitcnt vmcnt(0)
    ''')
```

```python
from common import *

LOG2E = '0x3fb8aa3b'
LOG2E_LO = '0x32a57060'
LN2 = '0x3f317218'
NT = 320
K1_LDS = 16896

def cmul(a, d, x, y, t=46):
    a(f'v_pk_mul_f32 v[{t}:{t+1}], v[{x}:{x+1}], v[{y}:{y+1}] op_sel:[1,1] op_sel_hi:[1,0] neg_lo:[1,0]')
    a(f'v_pk_fma_f32 v[{d}:{d+1}], v[{x}:{x+1}], v[{y}:{y+1}], v[{t}:{t+1}] op_sel:[0,0,0] op_sel_hi:[0,1,1]')

def exp_bf16(a, v, t0, t1):
    a(f'v_mul_f32 v{t0}, s60, v{v}')
    a(f'v_fma_f32 v{t1}, v{v}, s60, -v{t0}')
    a(f'v_fmac_f32 v{t1}, s61, v{v}')
    a(f'v_exp_f32 v{t0}, v{t0}')
    a(f'v_mul_f32 v{t1}, s62, v{t1}')
    a(f'v_fma_f32 v{v}, v{t0}, v{t1}, v{t0}')
    a(f'v_cvt_pk_bf16_f32 v{v}, v{v}, v{v}')
    a(f'v_lshlrev_b32 v{v}, 16, v{v}')

def gen_k1(name='k1_kernel', prefetch=True, rt=False):
    a = Asm()
    a.l.append(khead(name).rstrip())
    a(f'''
    s_cmp_ge_u32 s2, {NT + D}
    s_cbranch_scc1 L_k1_end
    ''')
    if rt: rt_begin(a)
    a(f'''
    s_cmp_ge_u32 s2, {NT}
    s_cbranch_scc1 L_k1_G
    ''')
    a(f'''
    s_load_dwordx4 s[4:7], s[0:1], {KA['q']}
    s_load_dwordx4 s[8:11], s[0:1], {KA['v']}
    s_load_dwordx2 s[12:13], s[0:1], {KA['ws']}
    s_mul_hi_u32 s36, s2, 429496730
    s_mul_i32 s37, s36, 10
    s_sub_u32 s37, s2, s37
    v_lshrrev_b32 v5, 5, v0
    v_and_b32 v6, 31, v0
    s_lshl_b32 s38, s36, 6
    v_lshl_add_u32 v5, v5, 3, s38          ; t0
    s_lshl_b32 s39, s37, 6
    v_lshl_add_u32 v6, v6, 1, s39          ; c
    v_mul_u32_u24 v1, 1280, v5
    v_lshl_add_u32 v1, v6, 1, v1
    v_subrev_u32 v2, 3840, v1
    v_lshlrev_b32 v4, 3, v6
    v_mul_u32_u24 v3, {ROW}, v6
    v_lshlrev_b32 v5, 1, v5
    v_sub_u32 v3, v3, v5
    v_add_u32 v3, 4080, v3
    s_movk_i32 s40, 5120
    s_mov_b32 s41, {OFF_UKV}
    s_movk_i32 s42, {ROW}
    s_mov_b32 s43, {OFF_UKV + ROW}
    s_waitcnt lgkmcnt(0)
    ''')
    a.srd(16, 4, S * D * 2); a.srd(20, 6, S * D * 2); a.srd(24, 8, S * D * 2); a.srd(28, 10, D * 8); a.srd(32, 12, WS_USED)
    for j in range(3):
        a(f'buffer_load_dword v{8+j}, v2, s[20:23], 0 offen offset:{1280*j}')
    for i in range(8):
        so = '0' if i < 4 else 's40'
        a(f'buffer_load_dword v{11+i}, v1, s[20:23], {so} offen offset:{1280*(i%4)}')
    a('buffer_load_dwordx4 v[36:39], v4, s[28:31], 0 offen')
    for i in range(8):
        so = '0' if i < 4 else 's40'
        a(f'buffer_load_dword v{20+i}, v1, s[24:27], {so} offen offset:{1280*(i%4)}')
    for i in range(8):
        so = '0' if i < 4 else 's40'
        a(f'buffer_load_dword v{28+i}, v1, s[16:19], {so} offen offset:{1280*(i%4)}')
    a('s_mov_b32 s44, 0x05040100\ns_mov_b32 s45, 0x07060302\ns_mov_b32 s46, 0xffff0000')
    a('s_waitcnt vmcnt(16)')
    a('''
    v_lshlrev_b32 v40, 16, v36
    v_and_b32 v41, s46, v36
    v_lshlrev_b32 v42, 16, v37
    v_and_b32 v43, s46, v37
    v_lshlrev_b32 v44, 16, v38
    v_and_b32 v45, s46, v38
    v_lshlrev_b32 v46, 16, v39
    v_and_b32 v47, s46, v39
    ''')
    for ch in range(2):
        w = 40 + 4 * ch
        for j in range(11):
            if ch == 0: a(f'v_lshlrev_b32 v{48+j}, 16, v{8+j}')
            else:       a(f'v_and_b32 v{48+j}, s46, v{8+j}')
        for i in range(8):
            a(f'v_mul_f32 v{60+i}, v{w}, v{48+i+3}')
        for m in range(1, 4):
            for i in range(8):
                a(f'v_fmac_f32 v{60+i}, v{w+m}, v{48+i+3-m}')
        if ch == 0: a('s_waitcnt vmcnt(8)')
        for i in range(8):
            if ch == 0: a(f'v_lshlrev_b32 v{48+i}, 16, v{20+i}')
            else:       a(f'v_and_b32 v{48+i}, s46, v{20+i}')
        for i in range(8):
            a(f'v_mul_f32 v{60+i}, v{60+i}, v{48+i}')
        pk = 68 + 8 * ch
        for m in range(4):
            a(f'v_cvt_pk_bf16_f32 v{pk+m}, v{60+7-2*m}, v{60+6-2*m}')
        so = 's41' if ch == 0 else 's43'
        a(f'buffer_store_dwordx4 v[{pk}:{pk+3}], v3, s[32:35], {so} offen')
    a('s_waitcnt vmcnt(2)')
    for ch in range(2):
        pk = 72 + 8 * ch
        sel = 's44' if ch == 0 else 's45'
        for m in range(4):
            a(f'v_perm_b32 v{pk+m}, v{28+6-2*m}, v{28+7-2*m}, {sel}')
        so = '0' if ch == 0 else 's42'
        a(f'buffer_store_dwordx4 v[{pk}:{pk+3}], v3, s[32:35], {so} offen')
    if rt: rt_end(a, 0)
    a('s_endpgm')
    a(f'''
    L_k1_G:
    s_sub_u32 s50, s2, {NT}                 ; d
    v_lshrrev_b32 v1, 6, v0
    s_load_dwordx8 s[4:11], s[0:1], {KA['logA']}
    s_load_dwordx4 s[12:15], s[0:1], {KA['log_dt']}
    s_load_dwordx2 s[44:45], s[0:1], {KA['ws']}
    v_readfirstlane_b32 s51, v1
    s_mov_b32 s60, {LOG2E}
    s_mov_b32 s61, {LOG2E_LO}
    s_mov_b32 s62, {LN2}
    s_cmp_eq_u32 s51, 3
    s_cbranch_scc1 L_k1_G3
    s_mul_i32 s52, s50, {N*2}
    v_lshl_add_u32 v1, v0, 1, s52
    s_lshl_b32 s53, s50, 1
    v_mov_b32 v7, s53
    s_mul_i32 s54, s51, 4608
    s_mov_b32 m0, s54
    v_and_b32 v8, 15, v0
    v_bfe_u32 v9, v0, 4, 2
    v_mul_u32_u24 v50, 288, v8
    v_lshl_add_u32 v50, v9, 4, v50
    v_add_u32 v50, s54, v50
    s_waitcnt lgkmcnt(0)
    ''')
    a.srd(16, 4, D*N*2); a.srd(20, 6, D*N*2); a.srd(24, 8, D*N*2); a.srd(28, 10, D*N*2)
    a.srd(32, 12, D*2); a.srd(36, 14, D*2); a.srd(40, 44, WS_USED)
    a('''
    buffer_load_ushort v6, v7, s[32:35], 0 offen      ; log_dt
    buffer_load_ushort v2, v1, s[16:19], 0 offen      ; logA
    buffer_load_ushort v3, v1, s[20:23], 0 offen      ; Aim
    buffer_load_ushort v4, v1, s[24:27], 0 offen      ; Cre
    buffer_load_ushort v5, v1, s[28:31], 0 offen      ; Cim
    buffer_load_ushort v96, v7, s[36:39], 0 offen     ; D_skip
    s_waitcnt vmcnt(5)
    v_lshlrev_b32 v6, 16, v6
    ''')
    exp_bf16(a, 6, 8, 9)
    a('s_waitcnt vmcnt(4)\nv_lshlrev_b32 v2, 16, v2')
    exp_bf16(a, 2, 8, 9)
    a('''
    s_waitcnt vmcnt(1)
    v_lshlrev_b32 v3, 16, v3
    v_lshlrev_b32 v4, 16, v4
    v_lshlrev_b32 v5, 16, v5
    v_mul_f32 v2, v2, v6                  ; ar*dt
    v_mul_f32 v3, v3, v6                  ; ai*dt
    v_add_f32 v6, v6, v6                  ; 2*dt
    v_mul_f32 v2, 0xbfb8aa3b, v2
    v_mul_f32 v3, 0.15915494, v3
    v_mul_f32 v4, v4, v6
    v_mul_f32 v5, v5, v6                  ; C' = 2*dt*C
    ''')
    def seed(dst, P):
        a(f'v_mul_f32 v8, {float(P)}, v2' if P <= 4 else f'v_mul_f32 v8, {hex(fbits(P))}, v2')
        a(f'v_mul_f32 v9, {float(P)}, v3' if P <= 4 else f'v_mul_f32 v9, {hex(fbits(P))}, v3')
        a('v_exp_f32 v8, v8')
        a('v_fract_f32 v9, v9')
        a(f'v_cos_f32 v{dst}, v9')
        a(f'v_sin_f32 v{dst+1}, v9')
        a('s_nop 0')
        a(f'v_pk_mul_f32 v[{dst}:{dst+1}], v[{dst}:{dst+1}], v[8:9] op_sel_hi:[1,0]')
    seed(12, 1); seed(18, 8); seed(20, 128); seed(28, 1024)
    W1, W2, W4, W8, W128, W256, W512, W768, W1024 = 12, 14, 16, 18, 20, 22, 24, 26, 28
    R3, R5, R6, R7, Q2, Q4, Q6, TMP = 30, 32, 34, 36, 38, 40, 42, 44
    def emit(x, row, neg=False):
        a(f'v_cvt_pk_bf16_f32 v48, v{x}, {"-" if neg else ""}v{x+1}')
        a(f'ds_write_addtid_b32 v48 offset:{row*288}')
    def emit_one(row):
        a('v_mov_b32 v48, 0x00003f80')
        a(f'ds_write_addtid_b32 v48 offset:{row*288}')
    emit(4, 0, True)
    cmul(a, TMP, 4, W8); emit(TMP, 1, True)
    for b in range(2, 16):
        cmul(a, TMP, TMP, W8); emit(TMP, b, True)
    for s in range(4):
        a(f'ds_read_b128 v[{52+4*s}:{55+4*s}], v50 offset:{64*s}')
    cmul(a, W2, W1, W1); cmul(a, W4, W2, W2)
    cmul(a, R3, W2, W1); cmul(a, R5, W4, W1); cmul(a, R6, W4, W2); cmul(a, R7, W4, R3)
    emit_one(0)
    for r, x in enumerate([W1, W2, R3, W4, R5, R6, R7], start=1):
        emit(x, r)
    emit(W128, 8)
    for r, x, keep in [(1, W1, None), (2, W2, Q2), (3, R3, None), (4, W4, Q4), (5, R5, None), (6, R6, Q6), (7, R7, None)]:
        dd = keep if keep else TMP
        cmul(a, dd, x, W128); emit(dd, 8 + r)
    for s in range(4):
        a(f'ds_read_b128 v[{68+4*s}:{71+4*s}], v50 offset:{64*s}')
    cmul(a, W256, W128, W128); cmul(a, W512, W256, W256); cmul(a, W768, W512, W256)
    a('s_waitcnt lgkmcnt(0)')
    def mf(tile):
        for s in range(4):
            c = '0' if s == 0 else f'v[{84+4*tile}:{87+4*tile}]'
            a(f'v_mfma_f32_16x16x32_bf16 v[{84+4*tile}:{87+4*tile}], v[{68+4*s}:{71+4*s}], v[{52+4*s}:{55+4*s}], {c}')
    mf(0)
    emit(W256, 0)
    for r, x in [(1, W2), (2, W4), (3, R6)]:
        cmul(a, TMP, x, W256); emit(TMP, r)
    for r, x in [(0, W128), (1, Q2), (2, Q4), (3, Q6)]:
        cmul(a, TMP, x, W256); emit(TMP, 4 + r)
    emit(W512, 8)
    cmul(a, TMP, W4, W512); emit(TMP, 9)
    cmul(a, TMP, W128, W512); emit(TMP, 10)
    cmul(a, TMP, Q4, W512); emit(TMP, 11)
    emit(W768, 12)
    cmul(a, TMP, W4, W768); emit(TMP, 13)
    cmul(a, TMP, W128, W768); emit(TMP, 14)
    cmul(a, TMP, Q4, W768); emit(TMP, 15)
    for s in range(4):
        a(f'ds_read_b128 v[{68+4*s}:{71+4*s}], v50 offset:{64*s}')
    a(f'v_cvt_pk_bf16_f32 v30, v{W1024}, v{W1024+1}')
    for r in range(1, 9):
        cmul(a, W1024, W1024, W128)
        a(f'v_cvt_pk_bf16_f32 v{30+r}, v{W1024}, v{W1024+1}')
    a('s_waitcnt lgkmcnt(0)')
    mf(1)
    for r in range(9):
        a(f'ds_write_addtid_b32 v{30+r} offset:{r*288}')
    for s in range(4):
        a(f'ds_read_b128 v[{68+4*s}:{71+4*s}], v50 offset:{64*s}')
    a('s_waitcnt lgkmcnt(0)')
    mf(2)
    a('''
    v_and_b32 v8, 63, v0
    v_lshlrev_b32 v8, 4, v8
    v_add_u32 v8, s54, v8
    s_nop 7
    ds_write_b128 v8, v[84:87]
    ds_write_b128 v8, v[88:91] offset:1024
    ds_write_b128 v8, v[92:95] offset:2048
    s_waitcnt lgkmcnt(0)
    s_barrier
    v_and_b32 v8, 63, v0
    v_lshlrev_b32 v8, 4, v8
    s_lshl_b32 s55, s51, 10
    v_add_u32 v8, s55, v8
    ds_read_b128 v[12:15], v8
    ds_read_b128 v[16:19], v8 offset:4608
    ds_read_b128 v[20:23], v8 offset:9216
    s_waitcnt lgkmcnt(0)
    v_pk_add_f32 v[12:13], v[12:13], v[16:17]
    v_pk_add_f32 v[14:15], v[14:15], v[18:19]
    v_pk_add_f32 v[12:13], v[12:13], v[20:21]
    v_pk_add_f32 v[14:15], v[14:15], v[22:23]
    ds_write_b128 v8, v[12:15] offset:13824
    s_waitcnt lgkmcnt(0)
    s_branch L_k1_join
    ''')
    a(f'''
    L_k1_G3:
    s_load_dwordx2 s[64:65], s[0:1], {KA['q']}
    s_load_dwordx2 s[66:67], s[0:1], {KA['gate_w']}
    s_load_dwordx2 s[68:69], s[0:1], {KA['ssm_k']}
    s_waitcnt lgkmcnt(0)
    ''')
    a.srd(16, 64, S*D*2); a.srd(20, 66, D*2); a.srd(24, 68, S*D*2); a.srd(36, 14, D*2); a.srd(40, 44, WS_USED)
    a(f'''
    s_lshl_b32 s53, s50, 1
    v_mov_b32 v7, s53
    buffer_load_ushort v96, v7, s[36:39], 0 offen
    v_and_b32 v1, 63, v0
    v_lshlrev_b32 v1, 2, v1
    s_cmp_ge_u32 s50, 512
    s_cbranch_scc1 L_k1_nogate
    s_mul_i32 s52, s50, {4*1280}
    v_add_u32 v2, s52, v1
    s_movk_i32 s56, 2560
    ''')
    for i in range(5):
        a(f'buffer_load_dword v{8+i}, v1, s[20:23], 0 offen offset:{256*i}')
    for r in range(4):
        so = '0' if r < 2 else 's56'
        for i in range(5):
            a(f'buffer_load_dword v{16+5*r+i}, v2, s[16:19], {so} offen offset:{1280*(r%2)+256*i}')
    a('s_waitcnt vmcnt(0)')
    for r in range(4):
        a(f'v_mov_b32 v{40+r}, 0')
    for i in range(5):
        for r in range(4):
            a(f'v_dot2_f32_bf16 v{40+r}, v{16+5*r+i}, v{8+i}, v{40+r}')
    a('s_nop 2')
    for ctrl in ['row_shr:1 row_mask:0xf', 'row_shr:2 row_mask:0xf', 'row_shr:4 row_mask:0xf', 'row_shr:8 row_mask:0xf', 'row_bcast:15 row_mask:0xa', 'row_bcast:31 row_mask:0xc']:
        for r in range(4):
            a(f'v_add_f32_dpp v{40+r}, v{40+r}, v{40+r} {ctrl} bank_mask:0xf')
    for r in range(4):
        a(f'v_cvt_pk_bf16_f32 v{40+r}, v{40+r}, v{40+r}')
    for r in range(4):
        a(f'v_lshlrev_b32 v{40+r}, 16, v{40+r}')
    for r in range(4):
        a(f'v_mul_f32 v{40+r}, 0xbfb8aa3b, v{40+r}')
    for r in range(4):
        a(f'v_exp_f32 v{40+r}, v{40+r}')
    for r in range(4):
        a(f'v_add_f32 v{40+r}, 1.0, v{40+r}')
    for r in range(4):
        a(f'v_rcp_f32 v{40+r}, v{40+r}')
    for r in range(4):
        a(f'v_cvt_pk_bf16_f32 v{40+r}, v{40+r}, v{40+r}')
    for r in range(4):
        a(f'v_lshlrev_b32 v{40+r}, 16, v{40+r}')
    a(f'''
    s_lshl_b32 s52, s50, 4
    s_add_u32 s52, s52, {OFF_G}
    v_mov_b32 v3, s52
    s_mov_b32 s58, 0
    s_mov_b32 s59, 0x80000000
    s_mov_b64 exec, s[58:59]
    buffer_store_dwordx4 v[40:43], v3, s[40:43], 0 offen
    s_mov_b64 exec, -1
    L_k1_nogate:
    ''')
    if prefetch:
        a('''
        s_lshl_b32 s52, s50, 12
        v_lshlrev_b32 v2, 2, v1
        v_add_u32 v2, s52, v2
        buffer_load_dwordx4 v[52:55], v2, s[24:27], 0 offen
        buffer_load_dwordx4 v[56:59], v2, s[24:27], 0 offen offset:1024
        buffer_load_dwordx4 v[60:63], v2, s[24:27], 0 offen offset:2048
        buffer_load_dwordx4 v[64:67], v2, s[24:27], 0 offen offset:3072
        ''')
    a('s_barrier')
    FT = 13824
    a('L_k1_join:\ns_barrier')
    def region(rg):
        if rg == 0:
            a(f'''
            v_lshrrev_b32 v8, 4, v0
            v_and_b32 v9, 15, v0
            v_lshl_add_u32 v9, v8, 5, v9
            v_lshlrev_b32 v9, 4, v9             ; 16*(b+32a)
            v_add_u32 v10, 1, v0
            v_lshrrev_b32 v8, 4, v10
            v_and_b32 v10, 15, v10
            v_lshl_add_u32 v10, v8, 5, v10
            v_lshlrev_b32 v10, 4, v10
            v_cmp_eq_u32 vcc, 31, v0
            v_mov_b32 v8, 1024
            s_nop 0
            v_cndmask_b32 v10, v10, v8, vcc
            ds_read_b128 v[12:15], v9 offset:{FT}
            ds_read_b128 v[16:19], v9 offset:{FT+256}
            ds_read_b32 v20, v10 offset:{FT}
            s_waitcnt lgkmcnt(0)
            ''')
        elif rg == 1:
            a(f'''
            v_subrev_u32 v9, 32, v0
            v_lshlrev_b32 v9, 4, v9             ; 16*(b+16a)
            v_add_u32 v10, 16, v9
            v_cmp_eq_u32 vcc, 63, v0
            v_mov_b32 v8, 512
            s_nop 0
            v_cndmask_b32 v10, v10, v8, vcc
            ds_read_b128 v[24:27], v9 offset:{FT+1024}
            ds_read_b32 v20, v10 offset:{FT+1024}
            s_waitcnt lgkmcnt(0)
            v_mov_b32 v12, v24
            v_mov_b32 v13, v24
            v_mov_b32 v14, v25
            v_mov_b32 v15, v26
            v_mov_b32 v16, v26
            v_mov_b32 v17, v26
            v_mov_b32 v18, v27
            v_mov_b32 v19, v20
            ''')
        elif rg == 2:
            def ad(dst, src):
                a(f'''
                v_lshrrev_b32 v8, 4, v{src}          ; a
                v_and_b32 v{dst}, 15, v{src}         ; b
                v_lshrrev_b32 v11, 1, v8
                v_lshl_add_u32 v{dst}, v11, 4, v{dst}
                v_lshlrev_b32 v{dst}, 4, v{dst}
                v_and_b32 v8, 1, v8
                v_lshl_add_u32 v{dst}, v8, 3, v{dst}
                ''')
            a('v_subrev_u32 v21, 64, v0\nv_add_u32 v22, 1, v21')
            ad(9, 21); ad(10, 22)
            a(f'''
            v_cmp_eq_u32 vcc, 127, v0
            v_mov_b32 v8, 512
            s_nop 0
            v_cndmask_b32 v10, v10, v8, vcc
            ds_read_b64 v[24:25], v9 offset:{FT+1024+512}
            ds_read_b32 v20, v10 offset:{FT+1024+512}
            s_waitcnt lgkmcnt(0)
            v_mov_b32 v12, v24
            v_mov_b32 v13, v24
            v_mov_b32 v14, v24
            v_mov_b32 v15, v25
            v_mov_b32 v16, v25
            v_mov_b32 v17, v25
            v_mov_b32 v18, v20
            v_mov_b32 v19, v20
            ''')
        else:
            def ad(dst, src):
                a(f'''
                v_lshrrev_b32 v8, 4, v{src}          ; a
                v_and_b32 v{dst}, 15, v{src}         ; b
                v_lshrrev_b32 v11, 2, v8
                v_lshl_add_u32 v{dst}, v11, 4, v{dst}
                v_lshlrev_b32 v{dst}, 4, v{dst}
                v_and_b32 v8, 3, v8
                v_lshl_add_u32 v{dst}, v8, 2, v{dst}
                ''')
            a('v_subrev_u32 v21, 128, v0\nv_add_u32 v22, 1, v21')
            ad(9, 21); ad(10, 22)
            a(f'''
            ds_read_b32 v24, v9 offset:{FT+2048}
            ds_read_b32 v20, v10 offset:{FT+2048}
            v_and_b32 v8, 1, v0
            v_cmp_eq_u32 vcc, 0, v8
            s_waitcnt lgkmcnt(0)
            v_mov_b32 v12, v24
            v_mov_b32 v13, v24
            v_mov_b32 v14, v24
            v_mov_b32 v15, v24
            v_cndmask_b32 v16, v20, v24, vcc
            v_mov_b32 v17, v20
            v_mov_b32 v18, v20
            v_mov_b32 v19, v20
            ''')
    a('''
    s_cmp_eq_u32 s51, 0
    s_cbranch_scc0 L_k1_r23
    s_mov_b32 s58, -1
    s_mov_b32 s59, 0
    s_mov_b64 exec, s[58:59]
    ''')
    region(0)
    a('''
    s_mov_b32 s58, 0
    s_mov_b32 s59, -1
    s_mov_b64 exec, s[58:59]
    ''')
    region(1)
    a('''
    s_mov_b64 exec, -1
    s_waitcnt vmcnt(0)
    v_lshlrev_b32 v96, 16, v96
    v_cmp_eq_u32 vcc, 0, v0
    v_mov_b32 v8, 0
    s_nop 0
    v_cndmask_b32 v96, v8, v96, vcc
    v_add_f32 v12, v12, v96
    s_branch L_k1_pack
    L_k1_r23:
    s_cmp_eq_u32 s51, 1
    s_cbranch_scc0 L_k1_r3
    ''')
    region(2)
    a('s_branch L_k1_pack\nL_k1_r3:')
    region(3)
    a('L_k1_pack:')
    for m in range(4):
        a(f'v_cvt_pk_bf16_f32 v{24+m}, v{12+2*m}, v{13+2*m}')
    for m in range(4):
        a(f'v_cvt_pk_bf16_f32 v{28+m}, v{13+2*m}, v{14+2*m}')
    a(f'''
    s_mul_i32 s52, s50, {ROW}
    s_add_u32 s53, s52, {OFF_KB0}
    s_add_u32 s52, s52, {OFF_KB1}
    v_lshlrev_b32 v1, 4, v0
    buffer_store_dwordx4 v[24:27], v1, s[40:43], s53 offen
    buffer_store_dwordx4 v[28:31], v1, s[40:43], s52 offen
    ''')
    if rt: rt_end(a, 0)
    a('L_k1_end:\ns_endpgm')
    return a.text(), kdesc(name, 100, 96)

import struct
def fbits(x):
    return struct.unpack('<I', struct.pack('<f', float(x)))[0]
```

```python
import sys
from common import *
import k1, k2
def build(fn, stamps=False, prefetch=True, rt=False):
    t1, d1 = k1.gen_k1(prefetch=prefetch, rt=rt)
    t2, d2 = k2.gen_k2(stamps=stamps, rt=rt)
    s = f'; @launch kernel=k1_kernel grid=({k1.NT + D},1,1) block=(256,1,1) lds={k1.K1_LDS}\n'
    s += f'; @launch kernel=k2_kernel grid=(256,1,1) block=(256,1,1) lds={k2.K2_LDS}\n'
    s += '.amdgcn_target "amdgcn-amd-amdhsa--gfx950"\n.text\n' + t1 + t2
    s += '.section .rodata,"a"\n.p2align 6\n' + d1 + '.p2align 6\n' + d2
    open(fn, 'w').write(s)
if __name__ == '__main__':
    build(sys.argv[1], stamps=('stamps' in sys.argv), rt=('rt' in sys.argv))
```

```python
S = 2048; D = 640; N = 192
ROW = 4224
OFF_UQ  = 0
OFF_UKV = OFF_UQ  + D * ROW
OFF_KB0 = OFF_UKV + D * ROW
OFF_KB1 = OFF_KB0 + D * ROW
OFF_G   = OFF_KB1 + D * ROW
WS_USED = OFF_G + S * 4
KA = dict(q=0, k=8, v=16, shift_k=24, ssm_k=32, ssm_D=40, u=48, logA=56, Aim=64, Cre=72, Cim=80,
          log_dt=88, D_skip=96, gate_w=104, out=112, dbg=120, ws=128)

class Asm:
    def __init__(self):
        self.l = []
    def __call__(self, s=''):
        for x in s.split('\n'):
            x = x.strip()
            if not x: continue
            if x.endswith(':') or x.startswith('.') or x.startswith(';'):
                self.l.append(x)
            else:
                self.l.append('    ' + x)
    def text(self):
        return '\n'.join(self.l) + '\n'
    def srd(self, r, base, size, off=0):
        if off:
            self(f's_add_u32 s{r}, s{base}, {off}')
            self(f's_addc_u32 s{r+1}, s{base+1}, 0')
        else:
            self(f's_mov_b32 s{r}, s{base}')
            self(f's_mov_b32 s{r+1}, s{base+1}')
        self(f's_mov_b32 s{r+2}, {size}')
        self(f's_mov_b32 s{r+3}, 0x00020000')

def kdesc(name, vgpr, sgpr=96, agpr=0):
    acc = (vgpr + 3) // 4 * 4
    return f'''.amdhsa_kernel {name}
  .amdhsa_next_free_vgpr {acc + agpr if agpr else vgpr}
  .amdhsa_next_free_sgpr {sgpr}
  .amdhsa_accum_offset {acc}
  .amdhsa_group_segment_fixed_size 0
  .amdhsa_kernarg_size 136
  .amdhsa_user_sgpr_count 2
  .amdhsa_user_sgpr_kernarg_segment_ptr 1
  .amdhsa_system_sgpr_workgroup_id_x 1
  .amdhsa_float_denorm_mode_32 3
.end_amdhsa_kernel
'''
def khead(name):
    return f'.globl {name}\n.p2align 8\n.type {name},@function\n{name}:\n'

OFF_RT = 20 << 20
def rt_begin(a, sreg=90):
    a(f's_memrealtime s[{sreg}:{sreg+1}]')
def rt_end(a, base_slot, sreg=90, vtmp=1, wavereg=None):
    a(f'''
    s_waitcnt vmcnt(0) lgkmcnt(0)
    s_memrealtime s[{sreg+2}:{sreg+3}]
    s_load_dwordx2 s[{sreg+4}:{sreg+5}], s[0:1], {KA['ws']}
    s_waitcnt lgkmcnt(0)
    s_add_u32 s{sreg+4}, s{sreg+4}, {OFF_RT}
    s_addc_u32 s{sreg+5}, s{sreg+5}, 0
    s_add_u32 s{sreg+1}, s2, {base_slot}
    s_lshl_b32 s{sreg+1}, s{sreg+1}, 3
    v_mov_b32 v{vtmp}, s{sreg+1}
    v_mov_b32 v{vtmp+1}, s{sreg}
    v_mov_b32 v{vtmp+2}, s{sreg+2}
    s_mov_b64 exec, 1
    global_store_dwordx2 v{vtmp}, v[{vtmp+1}:{vtmp+2}], s[{sreg+4}:{sreg+5}]
    s_waitcnt vmcnt(0)
    ''')
```

```python
from common import *

KC = 4160
UOFF = 4 * KC
SLOT = UOFF + 4576
GOFF = 6 * SLOT
XOFF = GOFF + 8192
K2_LDS = XOFF + 4 * 5120
SETE = [7, 6, 2]; SETO = [5, 4, 3, 1, 0]
ASET = [40, 104]; FSET = [72, 136]
VA, VF, VL, VT = 168, 169, 170, 171

def unit_loads(s, nA, nF):
    L = []
    n = max(nA, nF)
    for i in range(n):
        if i < nF: L.append(f'ds_read_b128 v[{FSET[s]+4*i}:{FSET[s]+4*i+3}], v{VF} offset:{512*(7-i)}')
        if i < nA:
            L.append(f'ds_read_b64 v[{ASET[s]+4*i}:{ASET[s]+4*i+1}], v{VA} offset:{512*i}')
            L.append(f'ds_read_b64 v[{ASET[s]+4*i+2}:{ASET[s]+4*i+3}], v{VA} offset:{512*i+8}')
    return L
def unit_mfmas(s, tiles, acc):
    M = []
    for a_ in range(8):
        for c in tiles:
            if a_ <= c:
                r = acc[c]
                M.append(f'v_mfma_f32_16x16x32_bf16 v[{r}:{r+3}], v[{ASET[s]+4*a_}:{ASET[s]+4*a_+3}], v[{FSET[s]+4*(c-a_)}:{FSET[s]+4*(c-a_)+3}], v[{r}:{r+3}]')
    return M
def interleave(a, M, L, post=()):
    L = list(L); nm = len(M); nl = len(L)
    k = 0
    for i, m in enumerate(M):
        a(m)
        tgt = min(nl, ((i + 1) * nl * 4 + 3 * nm - 1) // (3 * nm)) if nl else 0
        while k < tgt:
            a(L[k]); k += 1
    while k < nl:
        a(L[k]); k += 1
    for p in post: a(p)

def gen_k2(name='k2_kernel', stamps=False, rt=False):
    a = Asm()
    a.l.append(khead(name).rstrip())
    def stamp(i):
        if stamps:
            a(f's_memtime s[{70+2*i}:{71+2*i}]')
    a(f'''
    s_cmp_ge_u32 s2, 256
    s_cbranch_scc1 L_k2_end
    ''')
    stamp(0)
    if rt: rt_begin(a)
    a(f'''
    s_load_dwordx4 s[4:7], s[0:1], {KA['ssm_k']}
    s_load_dwordx2 s[8:9], s[0:1], {KA['out']}
    s_load_dwordx2 s[10:11], s[0:1], {KA['ws']}
    v_lshrrev_b32 v1, 6, v0
    v_and_b32 v{VL}, 63, v0
    v_mov_b32 v{VT}, v0
    v_readfirstlane_b32 s32, v1
    s_and_b32 s36, s2, 7                   ; x
    s_lshr_b32 s37, s2, 3                  ; j
    s_lshr_b32 s38, s37, 2                 ; m
    s_and_b32 s39, s37, 3                  ; i
    s_mul_i32 s36, s36, 80
    s_mul_i32 s38, s38, 10
    s_add_u32 s36, s36, s38
    s_lshl_b32 s33, s39, 1
    s_add_u32 s33, s33, s36                ; c0
    s_lshr_b32 s34, s39, 1
    s_add_u32 s34, s34, s36
    s_add_u32 s34, s34, 8                  ; cs
    s_and_b32 s35, s39, 1                  ; parity
    v_and_b32 v2, 15, v{VL}                ; i / col
    v_lshrrev_b32 v3, 4, v{VL}             ; kg
    v_add_u32 v4, 1, v2
    v_and_b32 v5, 3, v4                    ; copy j
    v_lshrrev_b32 v4, 2, v4                ; a_i
    v_mul_u32_u24 v5, {KC}, v5
    v_lshl_add_u32 v5, v4, 3, v5
    v_lshl_add_u32 v172, v3, 4, v5         ; laneA
    v_lshlrev_b32 v4, 5, v2
    v_sub_u32 v4, {UOFF + 480}, v4
    v_lshl_add_u32 v173, v3, 4, v4
    v_lshlrev_b32 v174, 4, v{VL}
    v_mov_b32 v8, 0
    v_mov_b32 v9, 0
    v_mov_b32 v10, 0
    v_mov_b32 v11, 0
    s_mul_i32 s40, s32, {SLOT}
    s_add_u32 s41, s40, {UOFF + 4096}
    v_add_u32 v6, s41, v174
    v_cmp_gt_u32 vcc, 30, v{VL}
    s_and_saveexec_b64 s[42:43], vcc
    ds_write_b128 v6, v[8:11]
    s_cmp_lt_u32 s32, 2
    s_cbranch_scc0 L_k2_notail2
    ds_write_b128 v6, v[8:11] offset:{4*SLOT - 0 if 4*SLOT < 65536 else 0}
    L_k2_notail2:
    s_mov_b64 exec, s[42:43]
    s_waitcnt lgkmcnt(0)
    ''')
    assert 4 * SLOT >= 65536
    idx = [i for i, l in enumerate(a.l) if 'ds_write_b128 v6, v[8:11] offset:0' in l][0]
    a.l[idx] = f'    v_add_u32 v6, {4*SLOT}, v6\n    ds_write_b128 v6, v[8:11]'
    a.srd(16, 4, D * S * 2); a.srd(20, 6, D * 2); a.srd(24, 8, S * D * 2); a.srd(28, 10, WS_USED)
    a(f'''
    v_and_b32 v2, 15, v{VL}
    v_lshlrev_b32 v2, 1, v2
    s_sub_u32 s44, s32, 16
    v_add_u32 v2, s44, v2                   ; x0 (signed)
    v_max_i32 v3, 0, v2
    v_lshlrev_b32 v3, 1, v3
    v_add_u32 v4, 1, v2
    v_max_i32 v4, 0, v4
    v_lshlrev_b32 v4, 1, v4
    s_mul_i32 s45, s34, {ROW}               ; cs*ROW
    s_add_u32 s46, s45, {OFF_KB0}
    s_lshl_b32 s47, s34, 12                 ; cs*4096
    s_lshl_b32 s48, s34, 1
    v_mov_b32 v5, s48
    buffer_load_ushort v176, v3, s[28:31], s46 offen
    buffer_load_ushort v177, v4, s[28:31], s46 offen
    buffer_load_ushort v178, v3, s[16:19], s47 offen
    buffer_load_ushort v179, v4, s[16:19], s47 offen
    buffer_load_ushort v180, v5, s[20:23], 0 offen
    s_and_b32 s48, s32, 1
    s_mul_i32 s48, s48, {OFF_KB1 - OFF_KB0}
    s_lshr_b32 s49, s32, 1
    s_lshl_b32 s49, s49, 2
    s_add_u32 s48, s48, s49
    s_add_u32 s48, s48, s46
    s_mul_i32 s49, s32, {KC}
    s_add_u32 s50, s49, {4*SLOT + 32}
    s_mov_b32 m0, s50
    s_nop 0
    ''')
    for i in range(4):
        a(f'buffer_load_dwordx4 v174, s[28:31], s48 offen offset:{1024*i} lds')
    a(f'''
    s_lshl_b32 s48, s32, 10
    s_add_u32 s50, s48, {4*SLOT + UOFF}
    s_mov_b32 m0, s50
    s_add_u32 s51, s45, s48
    s_add_u32 s51, s51, {OFF_UQ}
    buffer_load_dwordx4 v174, s[28:31], s51 offen lds
    s_add_u32 s50, s49, {5*SLOT + 32}
    s_mov_b32 m0, s50
    s_lshl_b32 s51, s32, 1
    s_add_u32 s51, s51, s47
    ''')
    for i in range(4):
        a(f'buffer_load_dwordx4 v174, s[16:19], s51 offen offset:{1024*i} lds')
    a(f'''
    s_add_u32 s50, s48, {5*SLOT + UOFF}
    s_mov_b32 m0, s50
    s_add_u32 s51, s45, s48
    s_add_u32 s51, s51, {OFF_UKV}
    buffer_load_dwordx4 v174, s[28:31], s51 offen lds
    ; g : chunks 2w, 2w+1
    s_lshl_b32 s48, s32, 11
    s_add_u32 s50, s48, {GOFF}
    s_mov_b32 m0, s50
    s_add_u32 s51, s48, {OFF_G}
    buffer_load_dwordx4 v174, s[28:31], s51 offen lds
    buffer_load_dwordx4 v174, s[28:31], s51 offen offset:1024 lds
    ''')
    a(f'''
    s_lshr_b32 s52, s32, 1
    s_add_u32 s52, s52, s33
    s_and_b32 s53, s32, 1                   ; 1 = conv A
    s_mul_i32 s54, s52, {ROW}               ; co*ROW
    s_lshl_b32 s55, s52, 12                 ; co*4096
    s_cmp_eq_u32 s53, 1
    s_cselect_b32 s56, s16, s28
    s_cselect_b32 s57, s17, s29
    s_cselect_b32 s58, s18, s30
    s_mov_b32 s59, 0x00020000
    s_add_u32 s60, s54, {OFF_KB0}
    s_add_u32 s61, s54, {OFF_KB1}
    s_cmp_eq_u32 s53, 1
    s_cselect_b32 s60, s55, s60
    s_add_u32 s62, s55, 2
    s_cmp_eq_u32 s53, 1
    s_cselect_b32 s61, s62, s61
    s_add_u32 s62, s60, 4                   ; copy2
    s_add_u32 s63, s61, 4                   ; copy3
    v_and_b32 v2, 15, v{VL}
    v_lshlrev_b32 v2, 1, v2
    v_lshrrev_b32 v6, 4, v{VL}
    v_add_u32 v2, v2, v6
    v_subrev_u32 v181, 16, v2               ; x0
    v_max_i32 v3, 0, v181
    v_lshlrev_b32 v3, 1, v3
    v_add_u32 v4, 1, v181
    v_max_i32 v4, 0, v4
    v_lshlrev_b32 v4, 1, v4
    s_lshl_b32 s48, s52, 1
    v_mov_b32 v5, s48
    buffer_load_ushort v182, v3, s[56:59], s60 offen
    buffer_load_ushort v183, v4, s[56:59], s60 offen
    buffer_load_ushort v184, v5, s[20:23], 0 offen
    s_mul_i32 s64, s32, {SLOT}
    ''')
    for j in range(4):
        a(f's_add_u32 s50, s64, {j*KC + 32}\ns_mov_b32 m0, s50')
        a('s_nop 0')
        for i in range(4):
            a(f'buffer_load_dwordx4 v174, s[56:59], s{60+j} offen offset:{1024*i} lds')
    a(f'''
    s_add_u32 s50, s64, {UOFF}
    s_mov_b32 m0, s50
    s_cmp_eq_u32 s53, 1
    s_cselect_b32 s51, {OFF_UKV}, {OFF_UQ}
    s_add_u32 s51, s51, s54
    ''')
    for i in range(4):
        a(f'buffer_load_dwordx4 v174, s[28:31], s51 offen offset:{1024*i} lds')
    stamp(1)
    def patch(lo, hi, dreg, vx0, vaddr, t0=8, t1=9):
        a(f'''
        v_lshlrev_b32 v{lo}, 16, v{lo}
        v_lshlrev_b32 v{hi}, 16, v{hi}
        v_cmp_le_i32 vcc, 0, v{vx0}
        v_mov_b32 v{t0}, 0
        s_nop 0
        v_cndmask_b32 v{lo}, v{t0}, v{lo}, vcc
        v_cmp_le_i32 vcc, -1, v{vx0}
        s_nop 1
        v_cndmask_b32 v{hi}, v{t0}, v{hi}, vcc
        ''')
        if dreg is not None:
            a(f'''
            v_cmp_eq_u32 vcc, 0, v{vx0}
            s_nop 1
            v_cndmask_b32 v{t1}, v{t0}, v{dreg}, vcc
            v_add_f32 v{lo}, v{lo}, v{t1}
            v_cmp_eq_u32 vcc, -1, v{vx0}
            s_nop 1
            v_cndmask_b32 v{t1}, v{t0}, v{dreg}, vcc
            v_add_f32 v{hi}, v{hi}, v{t1}
            ''')
        a(f'v_cvt_pk_bf16_f32 v{lo}, v{lo}, v{hi}')
        a(f'ds_write_b32 v{vaddr}, v{lo}')
    a(f'''
    s_waitcnt vmcnt(23)
    v_and_b32 v2, 15, v{VL}
    v_lshlrev_b32 v3, 1, v2
    v_add_u32 v3, s44, v3                   ; x0
    s_add_u32 s50, s49, {4*SLOT}
    v_lshl_add_u32 v4, v2, 2, s50
    v_add_u32 v5, {SLOT}, v4
    v_lshlrev_b32 v180, 16, v180
    ''')
    patch(176, 177, None, 3, 4)
    patch(178, 179, 180, 3, 5)
    a('s_waitcnt lgkmcnt(0)\ns_barrier')
    stamp(2)
    for r in range(40): a(f'v_mov_b32 v{r}, 0')
    def own_patch():
        a(f'''
        s_waitcnt vmcnt(0)
        v_lshrrev_b32 v40, 4, v{VL}
        v_mul_u32_u24 v40, {KC}, v40
        v_and_b32 v41, 15, v{VL}
        v_lshl_add_u32 v40, v41, 2, v40
        v_add_u32 v42, s64, v40
        v_lshlrev_b32 v184, 16, v184
        s_cmp_eq_u32 s53, 1
        s_cselect_b32 s48, -1, 0
        v_and_b32 v184, s48, v184
        ''')
        patch(182, 183, 184, 181, 42, 43, 44)
    def s_phase(tiles):
        nA = max(tiles) + 1; nF = max(tiles) + 1
        accB = {c: 4 * i for i, c in enumerate(tiles)}
        accA = {c: 20 + 4 * i for i, c in enumerate(tiles)}
        a(f'''
        s_lshl_b32 s48, s32, 7
        s_add_u32 s50, s48, {4*SLOT}
        v_add_u32 v{VA}, s50, v172
        v_add_u32 v{VF}, s50, v173
        ''')
        for l in unit_loads(0, nA, nF): a(l)
        a(f'v_add_u32 v{VA}, 64, v{VA}\nv_add_u32 v{VF}, 64, v{VF}\ns_waitcnt lgkmcnt(0)')
        interleave(a, unit_mfmas(0, tiles, accB), unit_loads(1, nA, nF),
                   [f'v_add_u32 v{VA}, {SLOT-64}, v{VA}', f'v_add_u32 v{VF}, {SLOT-64}, v{VF}', 's_waitcnt lgkmcnt(0)'])
        interleave(a, unit_mfmas(1, tiles, accB), unit_loads(0, nA, nF),
                   [f'v_add_u32 v{VA}, 64, v{VA}', f'v_add_u32 v{VF}, 64, v{VF}', 's_waitcnt lgkmcnt(0)'])
        interleave(a, unit_mfmas(0, tiles, accA), unit_loads(1, nA, nF), ['s_waitcnt lgkmcnt(0)'])
        interleave(a, unit_mfmas(1, tiles, accA), [])
        own_patch()
        a(f'''
        v_and_b32 v40, 15, v{VL}
        v_lshrrev_b32 v41, 4, v{VL}
        v_lshlrev_b32 v40, 4, v40
        v_lshl_add_u32 v40, v41, 2, v40
        v_lshlrev_b32 v41, 2, v40
        v_add_u32 v41, {GOFF}, v41               ; g address
        v_lshlrev_b32 v42, 1, v40
        v_sub_u32 v42, {4*SLOT + UOFF + 2*2044}, v42
        s_mul_i32 s48, s32, 5120
        s_add_u32 s48, s48, {XOFF}
        v_add_u32 v43, s48, v174
        ''')
        for i, c in enumerate(tiles):
            a(f'ds_read_b128 v[{48+8*i}:{51+8*i}], v41 offset:{1024*c}')
            a(f'v_subrev_u32 v44, {512*c}, v42')
            a(f'ds_read_b64 v[{52+8*i}:{53+8*i}], v44')
        a('s_mov_b32 s46, 0xffff0000')
        a('s_waitcnt lgkmcnt(0)')
        for i, c in enumerate(tiles):
            g = 48 + 8 * i; q = 52 + 8 * i; yb = accB[c]; ya = accA[c]
            a(f'''
            v_and_b32 v96, s46, v{q+1}
            v_lshlrev_b32 v97, 16, v{q+1}
            v_and_b32 v98, s46, v{q}
            v_lshlrev_b32 v99, 16, v{q}
            v_pk_fma_f32 v[96:97], v[96:97], v[{ya}:{ya+1}], v[{yb}:{yb+1}] neg_lo:[0,0,1] neg_hi:[0,0,1]
            v_pk_fma_f32 v[98:99], v[98:99], v[{ya+2}:{ya+3}], v[{yb+2}:{yb+3}] neg_lo:[0,0,1] neg_hi:[0,0,1]
            v_pk_fma_f32 v[100:101], v[{g}:{g+1}], v[96:97], v[{yb}:{yb+1}]
            v_pk_fma_f32 v[102:103], v[{g+2}:{g+3}], v[98:99], v[{yb+2}:{yb+3}]
            ds_write_b128 v43, v[100:103] offset:{1024*i}
            ''')
        a('s_waitcnt lgkmcnt(0)\ns_barrier')
        a(f'''
        v_and_b32 v40, 15, v{VL}
        v_lshrrev_b32 v41, 4, v{VL}
        v_lshlrev_b32 v40, 4, v40
        v_lshl_add_u32 v40, v41, 2, v40          ; T0
        v_mul_u32_u24 v40, 1280, v40
        s_lshl_b32 s48, s34, 1
        v_add_u32 v40, s48, v40
        ''')
        for rnd in range((len(tiles) + 3) // 4):
            cand = tiles[4*rnd:4*rnd+4]
            lab = f'L_k2_sred_{tiles[0]}_{rnd}'
            a(f's_cmp_lt_u32 s32, {len(cand)}\ns_cbranch_scc0 {lab}')
            a(f's_mov_b32 s50, {cand[0]}')
            for w in range(1, len(cand)):
                a(f's_cmp_eq_u32 s32, {w}\ns_cselect_b32 s50, {cand[w]}, s50')
            a(f'''
            s_mul_i32 s50, s50, {256*1280}
            s_lshl_b32 s48, s32, 10
            s_add_u32 s48, s48, {XOFF + 4096*rnd}
            v_add_u32 v43, s48, v174
            ds_read_b128 v[48:51], v43
            ds_read_b128 v[52:55], v43 offset:5120
            ds_read_b128 v[56:59], v43 offset:10240
            ds_read_b128 v[60:63], v43 offset:15360
            s_waitcnt lgkmcnt(0)
            v_pk_add_f32 v[48:49], v[48:49], v[52:53]
            v_pk_add_f32 v[50:51], v[50:51], v[54:55]
            v_pk_add_f32 v[56:57], v[56:57], v[60:61]
            v_pk_add_f32 v[58:59], v[58:59], v[62:63]
            v_pk_add_f32 v[48:49], v[48:49], v[56:57]
            v_pk_add_f32 v[50:51], v[50:51], v[58:59]
            v_cvt_pk_bf16_f32 v48, v48, v49
            v_cvt_pk_bf16_f32 v50, v50, v51
            buffer_store_short v48, v40, s[24:27], s50 offen
            buffer_store_short_d16_hi v48, v40, s[24:27], s50 offen offset:1280
            buffer_store_short v50, v40, s[24:27], s50 offen offset:2560
            buffer_store_short_d16_hi v50, v40, s[24:27], s50 offen offset:3840
            {lab}:
            ''')
    a('s_cmp_eq_u32 s35, 0\ns_cbranch_scc0 L_k2_sO')
    s_phase(SETE)
    a('s_branch L_k2_sdone\nL_k2_sO:')
    s_phase(SETO)
    a('L_k2_sdone:')
    stamp(3)
    stamp(4)
    for r in range(32): a(f'v_mov_b32 v{r}, 0')
    acc = {c: 4 * c for c in range(8)}
    tiles = list(range(8))
    a(f'''
    v_add_u32 v{VA}, s64, v172
    v_add_u32 v{VF}, s64, v173
    s_waitcnt lgkmcnt(0)
    ''')
    for l in unit_loads(0, 8, 8): a(l)
    bump = [f'v_add_u32 v{VA}, 64, v{VA}', f'v_add_u32 v{VF}, 64, v{VF}']
    for b in bump: a(b)
    a('s_mov_b32 s66, 0\ns_waitcnt lgkmcnt(0)\nL_k2_main:')
    interleave(a, unit_mfmas(0, tiles, acc), unit_loads(1, 8, 8), bump + ['s_waitcnt lgkmcnt(0)'])
    interleave(a, unit_mfmas(1, tiles, acc), unit_loads(0, 8, 8), bump + ['s_add_u32 s66, s66, 1', 's_cmp_lt_u32 s66, 4', 's_waitcnt lgkmcnt(0)'])
    a('s_cbranch_scc1 L_k2_main')
    stamp(5)
    a(f'''
    s_nop 7
    v_add_u32 v40, s64, v174
    ''')
    for c in range(8):
        a(f'ds_write_b128 v40, v[{4*c}:{4*c+3}] offset:{1024*c}')
    a(f'''
    v_and_b32 v40, 15, v{VL}
    v_lshrrev_b32 v41, 4, v{VL}
    v_lshlrev_b32 v40, 4, v40
    v_lshl_add_u32 v40, v41, 2, v40
    s_lshl_b32 s48, s32, 9
    v_add_u32 v45, s48, v40                  ; t (tile 2w)
    v_lshlrev_b32 v41, 2, v45
    v_add_u32 v41, {GOFF}, v41               ; g address
    v_lshlrev_b32 v42, 1, v45
    v_sub_u32 v42, {UOFF + 2*2044}, v42
    v_mul_u32_u24 v46, 1280, v45
    s_lshl_b32 s49, s33, 1
    v_add_u32 v46, s49, v46
    s_lshl_b32 s48, s32, 11
    v_add_u32 v43, s48, v174
    s_mov_b32 s46, 0xffff0000
    s_mov_b32 s47, {256*1280}
    s_waitcnt lgkmcnt(0)
    s_barrier
    ''')
    stamp(6)
    for i in range(2):
        b = 48 + 28 * i
        a(f'''
        ds_read_b128 v[{b}:{b+3}], v43 offset:{1024*i}
        ds_read_b128 v[{b+4}:{b+7}], v43 offset:{SLOT + 1024*i}
        ds_read_b128 v[{b+8}:{b+11}], v43 offset:{2*SLOT + 1024*i}
        ds_read_b128 v[{b+16}:{b+19}], v41 offset:{1024*i}
        ''')
        a(f'v_add_u32 v44, {3*SLOT}, v43')
        a(f'ds_read_b128 v[{b+12}:{b+15}], v44 offset:{1024*i}')
        a(f'v_subrev_u32 v44, {512*i}, v42')
        a(f'ds_read_b64 v[{b+20}:{b+21}], v44')
        a(f'ds_read_b64 v[{b+22}:{b+23}], v44 offset:{2*SLOT}')
    for i in range(2):
        b = 48 + 28 * i
        a('s_waitcnt lgkmcnt(7)' if (i == 0 and not stamps) else 's_waitcnt lgkmcnt(0)')
        for ch in range(2):
            yb = b + 8 * ch; ya = yb + 4; g = b + 16; q = b + 20 + 2 * ch; o = 108 + 4 * ch
            a(f'''
            v_and_b32 v104, s46, v{q+1}
            v_lshlrev_b32 v105, 16, v{q+1}
            v_and_b32 v106, s46, v{q}
            v_lshlrev_b32 v107, 16, v{q}
            v_pk_fma_f32 v[104:105], v[104:105], v[{ya}:{ya+1}], v[{yb}:{yb+1}] neg_lo:[0,0,1] neg_hi:[0,0,1]
            v_pk_fma_f32 v[106:107], v[106:107], v[{ya+2}:{ya+3}], v[{yb+2}:{yb+3}] neg_lo:[0,0,1] neg_hi:[0,0,1]
            v_pk_fma_f32 v[{o}:{o+1}], v[{g}:{g+1}], v[104:105], v[{yb}:{yb+1}]
            v_pk_fma_f32 v[{o+2}:{o+3}], v[{g+2}:{g+3}], v[106:107], v[{yb+2}:{yb+3}]
            ''')
        for r in range(4):
            a(f'v_cvt_pk_bf16_f32 v{116+4*i+r}, v{108+r}, v{112+r}')
        so = '0' if i == 0 else 's47'
        for r in range(4):
            a(f'buffer_store_dword v{116+4*i+r}, v46, s[24:27], {so} offen offset:{1280*r}')
    if stamps:
        stamp(7)
        a(f'''
        s_waitcnt vmcnt(0)
        s_memtime s[86:87]
        s_load_dwordx2 s[4:5], s[0:1], {KA['ws']}
        s_waitcnt lgkmcnt(0)
        s_add_u32 s4, s4, {16 << 20}
        s_addc_u32 s5, s5, 0
        s_mov_b32 s6, {1 << 20}
        s_mov_b32 s7, 0x00020000
        s_lshl_b32 s48, s2, 2
        s_add_u32 s48, s48, s32
        s_lshl_b32 s48, s48, 7
        v_lshlrev_b32 v1, 2, v{VL}
        v_add_u32 v1, s48, v1
        v_mov_b32 v2, 0
        ''')
        for i in range(9):
            a(f'v_mov_b32 v3, s{70+2*i}\nv_cmp_eq_u32 vcc, {i}, v{VL}\ns_nop 1\nv_cndmask_b32 v2, v2, v3, vcc')
        a(f'v_cmp_gt_u32 vcc, 16, v{VL}\ns_and_saveexec_b64 s[42:43], vcc\nbuffer_store_dword v2, v1, s[4:7], 0 offen')
    if rt:
        rt_end(a, 1024)
        a(f'''
        s_cmp_eq_u32 s2, 0
        s_cbranch_scc0 L_k2_end
        s_cmp_eq_u32 s32, 0
        s_cbranch_scc0 L_k2_end
        s_mov_b64 exec, -1
        s_load_dwordx2 s[4:5], s[0:1], {KA['dbg']}
        s_mov_b32 s8, s94
        s_mov_b32 s9, s95
        s_mov_b32 s10, 65536
        s_mov_b32 s11, 0x00020000
        v_lshlrev_b32 v1, 3, v{VL}
        v_mov_b32 v20, -1
        v_mov_b32 v21, 0
        v_mov_b32 v22, -1
        v_mov_b32 v23, 0
        ''')
        for i in range(15):
            a(f'buffer_load_dwordx2 v[2:3], v1, s[8:11], 0 offen offset:{512*i if i < 8 else 0}' if i < 8 else f'buffer_load_dwordx2 v[2:3], v1, s[8:11], s12 offen offset:{512*(i-8)}')
            a('s_waitcnt vmcnt(0)')
            lo = 20 if i < 5 else 22
            a(f'v_min_u32 v{lo}, v{lo}, v2\nv_max_u32 v{lo+1}, v{lo+1}, v3')
            if i == 7: a('s_movk_i32 s12, 4096')
        for r, op in [(20, 'min'), (21, 'max'), (22, 'min'), (23, 'max')]:
            for m in (1, 2, 4, 8, 16):
                a(f'ds_swizzle_b32 v4, v{r} offset:{hex((m << 10) | 0x1f)}\ns_waitcnt lgkmcnt(0)\nv_{op}_u32 v{r}, v{r}, v4')
            a(f's_nop 1\nv_readlane_b32 s14, v{r}, 32\ns_nop 3\nv_{op}_u32 v{r}, s14, v{r}')
        a(f'''
        v_mov_b32 v24, s90
        v_mov_b32 v25, s92
        v_mov_b32 v1, 0
        s_waitcnt lgkmcnt(0)
        s_mov_b64 exec, 1
        global_store_dwordx4 v1, v[20:23], s[4:5]
        global_store_dwordx2 v1, v[24:25], s[4:5] offset:16
        s_waitcnt vmcnt(0)
        ''')
    a('L_k2_end:\ns_endpgm')
    return a.text(), kdesc(name, 192, 100)
```
